```python
import torch

def _softmax(x, axis=-1):
    return torch.softmax(x, dim=axis)
def _gelu(x):
    return torch.nn.functional.gelu(x, approximate="tanh")
def _silu(x):
    return torch.nn.functional.silu(x)
def _sigmoid(x):
    return torch.sigmoid(x)
def _layernorm(x, axis=-1, eps=1e-5):
    m = x.mean(dim=axis, keepdim=True)
    v = x.var(dim=axis, keepdim=True, unbiased=False)
    return (x - m) / torch.sqrt(v + eps)
def _scatter_add(tgt, idx, src, axis=0):
    return tgt.clone().index_add_(axis, idx, src)
def _segment_sum(src, seg, n):
    out = torch.zeros((n,) + src.shape[1:], dtype=src.dtype)
    return out.index_add_(0, seg, src)
def _pad(x, pw):
    flat = tuple(v for pair in reversed(pw) for v in pair)
    return torch.nn.functional.pad(x, flat)

kernel_name = 'gated_mix__mha_block__sliding_local_dilated__prompt'

def setup_inputs():

    _w = (lambda a: (lambda t: t.to(torch.bfloat16) if t.is_floating_point() else t)(torch.as_tensor(a)))
    def _A_setup():
        B, S, D, H = 1, 2048, 1024, 32
        return {
            "x": _w((lambda *s: torch.randn(*s, dtype=torch.bfloat16) * 0.05)(B, S, D)),
            "wqkv": _w((lambda *s: torch.randn(*s, dtype=torch.bfloat16) * 0.8)(D, 3 * D)),
            "wo": _w((lambda *s: torch.randn(*s, dtype=torch.bfloat16) * 0.1)(D, D)),
        }
    _A_in = _A_setup()

    def _B_setup():
        B, S, D = 1, 2048, 1024
        return {
            "x": _w((lambda *s: torch.randn(*s, dtype=torch.bfloat16) * 0.05)(B, S, D)),
            "wqkv": _w((lambda *s: torch.randn(*s, dtype=torch.bfloat16) * 0.8)(D, 3 * D)),
            "wo": _w((lambda *s: torch.randn(*s, dtype=torch.bfloat16) * 0.05)(D, D)),
        }
    _B_in = _B_setup()

    return {
        "A_x": _A_in["x"],
        "A_wqkv": _A_in["wqkv"],
        "A_wo": _A_in["wo"],
        "B_x": _B_in["x"],
        "B_wqkv": _B_in["wqkv"],
        "B_wo": _B_in["wo"],
        "gate_w": _w((lambda *s: torch.randn(*s, dtype=torch.bfloat16) * 0.05)(1024) * 16.0),
    }

def reference(A_x, A_wqkv, A_wo, B_x, B_wqkv, B_wo, gate_w):
    def _A_ref(x, wqkv, wo):
        B, S, D = x.shape
        H = 32
        Dh = D // H
        qkv = (lambda x, *d: x.permute(*d))((x @ wqkv).reshape(B, S, 3, H, Dh), 2, 0, 3, 1, 4)
        q, k, v = qkv[0], qkv[1], qkv[2]
        scores = torch.einsum("bhqd,bhkd->bhqk", q, k) * (Dh ** -0.5)
        p = _softmax(scores, axis=-1)
        o = torch.einsum("bhqk,bhkd->bhqd", p, v)
        return (lambda x, *d: x.permute(*d))(o, 0, 2, 1, 3).reshape(B, S, D) @ wo

    def _B_ref(x, wqkv, wo):
        B, S, D = x.shape
        H = 32; Dh = D // H
        W, dil = 8, 2
        qkv = (lambda x, *d: x.permute(*d))((x @ wqkv).reshape(B, S, 3, H, Dh), 2, 0, 3, 1, 4)
        q, k, v = qkv[0], qkv[1], qkv[2]
        scale = Dh ** -0.5
        pos = torch.arange(S)
        off = torch.arange(W) * dil
        idx = pos[:, None] - off[None, :]
        mask = idx >= 0
        idx_c = torch.where(mask, idx, 0).reshape(-1)
        kg = k[:, :, idx_c, :].reshape(B, H, S, W, Dh)
        vg = v[:, :, idx_c, :].reshape(B, H, S, W, Dh)
        logits = torch.einsum("bhsd,bhswd->bhsw", q, kg) * scale
        logits = torch.where(mask[None, None, :, :], logits, -1e9)
        attn = _softmax(logits, axis=-1)
        o = torch.einsum("bhsw,bhswd->bhsd", attn, vg)
        return (lambda x, *d: x.permute(*d))(o, 0, 2, 1, 3).reshape(B, S, D) @ wo

    x = A_x
    g = _sigmoid((x * gate_w).sum(-1, keepdims=True))
    a = _A_ref(x, A_wqkv, A_wo)
    b = _B_ref(x, B_wqkv, B_wo)
    return g * a + (1 - g) * b
```

```python
import re

class Prog:
    def __init__(self):
        self.lines = []
        self.trace = []
        self.trace_on = True
    def __call__(self, s):
        for l in s.split("\n"):
            l = l.rstrip()
            if l.strip() == "": continue
            self.lines.append(l)
    def text(self): return "\n".join(self.lines) + "\n"

REG = re.compile(r'\b([vas])\[(\d+):(\d+)\]|\b([vas])(\d+)\b|\b(vcc|exec|m0|scc)\b')
def regs_of(op):
    out = []
    for m in REG.finditer(op):
        if m.group(1):
            out += [(m.group(1), i) for i in range(int(m.group(2)), int(m.group(3))+1)]
        elif m.group(4):
            out.append((m.group(4), int(m.group(5))))
        else:
            n = m.group(6)
            if n == "vcc": out += [("s", "vcc")]
            elif n == "exec": out += [("s", "exec")]
            elif n == "m0": out += [("s", "m0")]
    return out

TRANS = ("v_exp_", "v_log_", "v_rcp_", "v_rsq_", "v_sqrt_", "v_sin_", "v_cos_")
def split_ops(rest):
    ops, depth, cur = [], 0, ""
    for ch in rest:
        if ch == "[": depth += 1
        if ch == "]": depth -= 1
        if ch == "," and depth == 0:
            ops.append(cur.strip()); cur = ""
        else: cur += ch
    if cur.strip(): ops.append(cur.strip())
    return ops

SMF_PASSES = 8
class Ins:
    __slots__ = ("text","op","ops","dst","src","kind","passes","lds_dma","nops","lineno")
    def __init__(self, text, lineno=0):
        self.text = text; self.lineno = lineno
        t = text.split(";")[0].split("//")[0].strip()
        parts = t.split(None, 1)
        self.op = parts[0]
        rest = parts[1] if len(parts) > 1 else ""
        self.ops = split_ops(rest)
        op = self.op; ops = self.ops
        self.dst = []; self.src = []; self.passes = 0; self.lds_dma = False; self.nops = 1
        R = lambda i: regs_of(ops[i]) if i < len(ops) else []
        allr = lambda a: sum([regs_of(o) for o in ops[a:]], [])
        if op.startswith("v_mfma") or op.startswith("v_smfmac"):
            self.kind = "mfma"
            self.passes = 8 if "32x32" in op else 4
            if op.startswith("v_smfmac") and "16x16x64" in op: self.passes = SMF_PASSES
            self.dst = R(0); self.src = R(1) + R(2) + R(3)
            if op.startswith("v_smfmac"): self.src += R(0)
        elif op.startswith("ds_read") or op.startswith("ds_bpermute") or op.startswith("ds_swizzle") or op.startswith("ds_permute"):
            self.kind = "ds"; self.dst = R(0); self.src = allr(1)
        elif op.startswith("ds_"):
            self.kind = "ds"; self.src = allr(0)
        elif op.startswith("buffer_load") or op.startswith("global_load"):
            self.kind = "vmem"
            if " lds" in (" " + rest) or op.startswith("global_load_lds"):
                self.lds_dma = True; self.src = allr(0) + [("s", "m0")]
            else:
                self.dst = R(0); self.src = allr(1)
        elif op.startswith("buffer_store") or op.startswith("global_store") or op.startswith("buffer_atomic") or op.startswith("global_atomic"):
            self.kind = "vmemst"; self.src = allr(0)
            if " sc0" in rest and "atomic" in op: self.dst = R(0)
        elif op.startswith("buffer_wbl2") or op.startswith("buffer_inv"):
            self.kind = "vmemst"
        elif op.startswith("s_load") or op.startswith("s_memtime") or op.startswith("s_memrealtime") or op.startswith("s_buffer_load"):
            self.kind = "smem"; self.dst = R(0); self.src = allr(1)
        elif op == "s_waitcnt": self.kind = "wait"
        elif op == "s_nop":
            self.kind = "nop"; self.nops = int(ops[0], 0) + 1
        elif op in ("s_barrier", "s_endpgm", "s_setprio", "s_sleep", "s_branch") or op.startswith("s_cbranch"):
            self.kind = "ctl"
        elif op.startswith("s_cmp") or op.startswith("s_bitcmp"):
            self.kind = "salu"; self.src = allr(0); self.dst = []
        elif op.startswith("s_"):
            self.kind = "salu"; self.dst = R(0); self.src = allr(1)
            if "saveexec" in op: self.dst += [("s", "exec")]; self.src += [("s","exec")]
        elif op.startswith("v_"):
            self.kind = "valu"
            if op.startswith("v_cmpx"):
                self.dst = R(0) + [("s","exec")]; self.src = allr(1)
            elif op.startswith("v_cmp"):
                self.dst = R(0); self.src = allr(1)
            elif "_co_" in op:
                self.dst = R(0) + R(1); self.src = allr(2)
            elif op.startswith("v_permlane") and "swap" in op:
                self.dst = R(0) + R(1); self.src = R(0) + R(1)
            else:
                self.dst = R(0); self.src = allr(1)
                if op.startswith("v_fmac") or op.startswith("v_mac") or op.startswith("v_pk_fmac") or op.startswith("v_dot2c") or op.startswith("v_writelane") or "UNUSED_PRESERVE" in rest:
                    self.src += R(0)
                if op.startswith("v_cndmask") and len(ops) == 3: self.src += [("s","vcc")]
                if op.startswith("v_addc") or op.startswith("v_subb"): pass
        else:
            raise ValueError("unknown instr: " + text)
    def is_trans(self): return self.op.startswith(TRANS)

def parse(lines):
    out = []
    for n, l in enumerate(lines):
        t = l.split(";")[0].split("//")[0].strip()
        if not t or t.endswith(":") or t.startswith("."): continue
        out.append(Ins(t, n))
    return out

def lint(lines, name="", accum_offset=256, verbose=True):
    ins = parse(lines)
    errs = []
    def norm(r):
        return r
    last_write = {}
    mfma_c_read = {}
    pos = 0
    hist = []
    for i in ins:
        def dist(p): return pos - p - 1 + 0
        for r in i.src:
            if r in last_write:
                p, w, pend = last_write[r]
                d = pos - pend
                need = 0; why = ""
                if w.kind == "mfma":
                    isC = i.kind == "mfma" and r in regs_of(i.ops[3] if len(i.ops) > 3 else "") and not (r in regs_of(i.ops[1]) or r in regs_of(i.ops[2]))
                    if i.kind == "mfma" and isC:
                        same = regs_of(i.ops[3]) == w.dst and i.passes == w.passes
                        need = 0 if same else (10 if w.passes == 8 else 6); why = "mfmaD->mfmaC"
                        if i.op.startswith("v_smfmac"): need = 0
                    elif i.kind == "mfma" and i.op.startswith("v_smfmac") and r in i.dst:
                        need = 0 if (i.dst == w.dst and i.passes == w.passes) else (10 if w.passes == 8 else 6); why="mfmaD->smfmacC"
                    elif i.kind == "mfma":
                        need = 12 if w.passes == 8 else 8; why = "mfmaD->mfmaAB"
                    elif i.kind in ("valu", "ds", "vmem", "vmemst"):
                        need = 12 if w.passes == 8 else 8; why = "mfmaD->read"
                elif w.kind == "valu":
                    if r[0] in "va":
                        if i.kind == "mfma": need = 2; why = "valu->mfma"
                        elif i.kind == "valu":
                            if "dpp" in i.text or "row_" in i.text or "quad_perm" in i.text: need = 2; why = "valu->dpp"
                            if i.op.startswith("v_permlane"): need = 2; why = "valu->permlane"
                            if i.op.startswith("v_readlane") or i.op.startswith("v_readfirstlane"): need = max(need,1); why = "valu->readlane"
                            if w.is_trans() and not i.is_trans(): need = max(need, 1); why = why or "trans->valu"
                            if ("sdwa" in w.op or "op_sel" in w.text) : need = max(need, 1); why = why or "sdwa/opsel->valu"
                    else:
                        if i.kind in ("vmem", "vmemst"): need = 5; why = "valu sgpr->vmem"
                        elif i.kind == "valu":
                            need = 2; why = "valu sgpr->valu"
                            if i.op.startswith("v_readlane") or i.op.startswith("v_writelane"): need = 4
                            if r == ("s","exec"): need = 0
                        elif i.kind in ("salu","smem"): need = 1; why = "valu sgpr->salu(pad)"
                elif w.kind == "salu":
                    if r == ("s", "m0") and i.lds_dma: need = 1; why = "m0->dma"
                if d < need:
                    errs.append(f"[{name}] hazard {why}: need {need} have {d}\n    P: {w.text}\n    C: {i.text}")
        for r in i.dst:
            if r in last_write:
                p, w, pend = last_write[r]
                d = pos - pend
                if w.kind == "mfma" and i.kind in ("valu", "ds", "vmem"):
                    need = 12 if w.passes == 8 else 8
                    if d < need: errs.append(f"[{name}] hazard mfmaD->WAW: need {need} have {d}\n    P: {w.text}\n    C: {i.text}")
                if w.kind == "mfma" and i.kind == "mfma":
                    c = regs_of(i.ops[3]) if len(i.ops) > 3 else []
                    if r not in c and not i.op.startswith("v_smfmac"):
                        need = 12 if w.passes == 8 else 8
                        if d < need: errs.append(f"[{name}] hazard mfmaD->mfmaD WAW(no chain): need {need} have {d}\n    P: {w.text}\n    C: {i.text}")
            if r in mfma_c_read and i.kind == "valu":
                p, w = mfma_c_read[r]
                d = pos - p
                need = 7 if w.passes == 8 else 3
                if d < need: errs.append(f"[{name}] hazard mfmaC WAR: need {need} have {d}\n    P: {w.text}\n    C: {i.text}")
        for h_pos, h in hist[-3:]:
            if h.kind == "vmemst" and ("x4" in h.op or "x3" in h.op) and i.kind == "valu":
                data = regs_of(h.ops[0]) if h.op.startswith("buffer") else regs_of(h.ops[1])
                if any(r in data for r in i.dst):
                    d = pos - h_pos
                    if d < 2: errs.append(f"[{name}] hazard store WAR: need 2 have {d}\n    P: {h.text}\n    C: {i.text}")
        start = pos
        pos += i.nops
        for r in i.dst: last_write[r] = (start, i, pos)
        if i.kind == "mfma" and len(i.ops) > 3:
            for r in regs_of(i.ops[3]): mfma_c_read[r] = (pos, i)
        hist.append((pos, i))
    vq, lq = [], []
    for i in ins:
        if i.kind == "wait":
            t = i.text
            m = re.search(r"vmcnt\((\d+)\)", t)
            if m:
                n = int(m.group(1))
                while len(vq) > n: vq.pop(0)
            m = re.search(r"lgkmcnt\((\d+)\)", t)
            if m:
                n = int(m.group(1))
                if any(x.kind == "smem" for x in lq) and n > 0:
                    errs.append(f"[{name}] lgkmcnt({n}) with SMEM outstanding: {t}")
                while len(lq) > n: lq.pop(0)
            continue
        if i.kind == "ctl" and i.op == "s_endpgm": vq, lq = [], []
        touched = set(i.src) | set(i.dst)
        for q in (vq, lq):
            for x in q:
                bad = [r for r in x.dst if r in touched]
                if bad and x.kind == "vmem" and i.kind == "vmem" and not [r for r in x.dst if r in set(i.src)]: bad = []
                if bad and x is not i:
                    errs.append(f"[{name}] use of pending load result {bad[0]}\n    P: {x.text}\n    C: {i.text}")
        if i.kind in ("vmem", "vmemst"): vq.append(i)
        if i.kind in ("ds", "smem"): lq.append(i)
        if len(vq) > 63: errs.append(f"[{name}] vmcnt overflow (>63 outstanding) at {i.text}")
        if len([x for x in lq]) > 15 and False: errs.append(f"[{name}] lgkm overflow at {i.text}")
    if verbose:
        seen = set()
        for e in errs:
            if e not in seen:
                seen.add(e); print(e)
        print(f"lint {name}: {len(ins)} instrs, {len(seen)} distinct problems")
    return errs
```

```python
from common import *
from asmdsl import *

ATT_LDS = 131072
NEG_INF = 0xff800000

def gen_att(name="att_kernel", stamps=False, st_flags="", force_slow=False, do_attb=True, smf=False, do_main=True, do_bar=True, do_rd=True, do_dma=True, late=True, order=0, rate=2, prio=0):
    P = []; TR = {}
    cur = [None]
    def E(s, tr=True):
        for l in s.split("\n"):
            if l.strip() == "": continue
            P.append(l)
            if tr and cur[0] is not None:
                for c in cur[0]: c.append(l)
    t_k0 = []; t_k1 = []
    cur[0] = [t_k0, t_k1]
    sWS = 8
    s_w, s_kh, s_qg, s_head, s_qb = 12, 13, 14, 15, 16
    s_g, s_l, s_so = 17, 18, 19
    s_t = 20
    s_q = 32; s_tf = 33; s_ob = 34; s_i = 35; s_tb = 36; s_t0 = 37
    s_st0 = 40
    vLane, vL16, vR0, vR1 = 1, 2, 3, 4
    vL = 5; vT = 6
    vS = {"a": 8, "b": 24}; vP = {"a": 40, "b": 48}
    aQ = {"a": 0, "b": 8}; aK = [16, 24]; aV = [32, 40]; aO = {"a": 48, "b": 64}; aL = {"a": 80, "b": 84}; aOnes = 88
    bQ, bK0, bK1, bV0, bV1, bOMG, bG, vG4 = 64, 72, 80, 88, 96, 100, 101, 116
    def stamp(i):
        if stamps: E(f"  s_memtime s[{s_st0+2*i}:{s_st0+2*i+1}]")
    E(f"  s_cmp_ge_u32 s2, 256\n  s_cbranch_scc1 L_{name}_end")
    E(f"""  s_load_dwordx2 s[4:5], s[0:1], {KA_WS}
  v_and_b32 v{vLane}, 63, v0
  v_lshrrev_b32 v{vT}, 6, v0
  s_and_b32 s{s_t}, s2, 7
  v_readfirstlane_b32 s{s_w}, v{vT}
  s_lshr_b32 s{s_t+1}, s2, 3
  s_and_b32 s{s_t+2}, s{s_t+1}, 3
  s_lshl_b32 s{s_head}, s{s_t}, 2
  s_add_u32 s{s_head}, s{s_head}, s{s_t+2}
  s_lshr_b32 s{s_qb}, s{s_t+1}, 2
  s_lshr_b32 s{s_kh}, s{s_w}, 2
  s_and_b32 s{s_qg}, s{s_w}, 3
  v_lshlrev_b32 v{vL16}, 4, v{vLane}
  s_lshl_b32 s{s_t}, s{s_head}, 17
  s_lshl_b32 s{s_t+1}, s{s_qb}, 3
  s_lshl_b32 s{s_t+2}, s{s_qg}, 1
  s_add_u32 s{s_t+1}, s{s_t+1}, s{s_t+2}
  s_add_u32 s{s_tf}, s{s_t+1}, s{s_kh}
  s_lshl_b32 s{s_t+1}, s{s_t+1}, 11
  s_add_u32 s{s_q}, s{s_t}, s{s_t+1}
  s_bfe_u32 s{s_t+2}, s{s_w}, 0x10001
  s_add_u32 s{s_t+2}, s{s_t+2}, 1
  s_mul_i32 s{s_t+2}, s{s_t+2}, {QKV_TYPE}
  s_add_u32 s{s_g}, s{s_t}, s{s_t+2}
  s_lshl_b32 s{s_t+2}, s{s_kh}, 16
  s_add_u32 s{s_g}, s{s_g}, s{s_t+2}
  s_and_b32 s{s_t+2}, s{s_w}, 1
  s_lshl_b32 s{s_t+2}, s{s_t+2}, 10
  s_add_u32 s{s_g}, s{s_g}, s{s_t+2}
  s_lshl_b32 s{s_l}, s{s_w}, 10
  s_lshl_b32 s{s_t+2}, s{s_kh}, 12
  v_add_u32 v{vR0}, s{s_t+2}, v{vL16}
  v_add_u32 v{vR1}, 0x10000, v{vR0}
  s_waitcnt lgkmcnt(0)""")
    E(srd(sWS, 4, WS_SIZE))
    stamp(0)
    nvm = [0]
    marks = {}
    def VM(s):
        E(s); nvm[0] += 1
    for x, o in (("a", 0), ("b", 2048)):
        for j in range(2):
            VM(f"  buffer_load_dwordx4 a[{aQ[x]+4*j}:{aQ[x]+4*j+3}], v{vL16}, s[{sWS}:{sWS+3}], s{s_q} offen offset:{o+1024*j}")
    Q = []
    def dma_items(c, earliest):
        for st in range(4):
            Q.append((earliest, [f"  s_add_u32 m0, s{s_l}, {(c % 4)*32768 + st*8192}", f"  s_add_u32 s{s_so}, s{s_g}, {(4*c+st)*2048}"],
                      f"  buffer_load_dwordx4 v{vL16}, s[{sWS}:{sWS+3}], s{s_so} offen lds", c if st == 3 else None))
    def pop(ph, n):
        out = []
        while n > 0 and Q and Q[0][0] <= ph:
            out.append(Q.pop(0)); n -= 1
        return out
    def emit_item(it):
        for l in it[1]: E(l)
        VM(it[2])
        if it[3] is not None: marks[it[3]] = nvm[0]
    dma_items(0, -1)
    for it in pop(-1, 99): emit_item(it)
    s_b = 52
    E(f"""  s_lshl_b32 s{s_tb}, s{s_qb}, 3
  s_add_u32 s{s_tb}, s{s_tb}, s{s_w}
  s_lshl_b32 s{s_t}, s{s_head}, 17
  s_add_u32 s{s_t}, s{s_t}, {QKV_BR}
  s_lshl_b32 s{s_b+1}, s{s_tb}, 11
  s_add_u32 s{s_b+1}, s{s_t}, s{s_b+1}
  s_cmp_eq_u32 s{s_tb}, 0
  s_cselect_b32 s{s_b+2}, 0, 2048
  s_cselect_b32 s{s_t0}, -1, 0
  s_sub_u32 s{s_b+2}, s{s_b+1}, s{s_b+2}
  s_add_u32 s{s_b+3}, s{s_b+1}, {QKV_TYPE}
  s_add_u32 s{s_b+4}, s{s_b+2}, {QKV_TYPE}
  s_add_u32 s{s_b+5}, s{s_b+1}, {2*QKV_TYPE}
  s_add_u32 s{s_b+6}, s{s_b+2}, {2*QKV_TYPE}
  v_and_b32 v{vT}, 31, v{vLane}
  v_lshlrev_b32 v{vG4}, 2, v{vT}
  s_lshl_b32 s{s_b+7}, s{s_tf}, 7
  s_add_u32 s{s_b+7}, s{s_b+7}, {WS_G}
  s_lshl_b32 s{s_b}, s{s_tb}, 7
  s_add_u32 s{s_b}, s{s_b}, {WS_G + 8192}""")
    dma_items(1, 0 if late else -1)
    dma_items(2, 2 if late else -1)
    dma_items(3, 6 if late else -1)
    eb = 10 if late else -1
    def bl(dst, sreg, off): Q.append((eb, [], f"  buffer_load_dwordx4 v[{dst}:{dst+3}], v{vL16}, s[{sWS}:{sWS+3}], s{sreg} offen offset:{off}", None))
    if do_attb:
        for j in range(2): bl(bQ+4*j, s_b+1, 1024*j)
        for j in range(2): bl(bK0+4*j, s_b+3, 1024*j)
        for j in range(2): bl(bK1+4*j, s_b+4, 1024*j)
        for j in range(2): bl(bV0+4*j, s_b+5, 1024*j)
        bl(bV1, s_b+6, 1024)
    Q.append((eb, [], f"  buffer_load_dword v{bG}, v{vG4}, s[{sWS}:{sWS+3}], s{s_b+7} offen", None))
    Q.append((eb, [], f"  buffer_load_dword v{bOMG}, v{vG4}, s[{sWS}:{sWS+3}], s{s_b} offen", None))
    if not late:
        for it in pop(-1, 99): emit_item(it)
    E(f"""  v_lshrrev_b32 v{vT}, 2, v{vLane}
  v_lshrrev_b32 v{vT+1}, 4, v{vLane}
  v_xor_b32 v{vT}, v{vT}, v{vT+1}
  v_and_b32 v{vT}, 1, v{vT}
  v_sub_u32 v{vT}, v{vT}, 1
  v_and_b32 v{vT}, 0x3f803f80, v{vT}""")
    for q in range(4): E(f"  v_accvgpr_write_b32 a{aOnes+q}, v{vT}")
    vIdx = 117; aOnesS = 92
    if smf:
        E(f"""  v_and_b32 v{vT}, 6, v{vLane}
  v_cmp_eq_u32 vcc, 0, v{vT}
  v_cmp_eq_u32 s[{s_t}:{s_t+1}], 4, v{vT}
  v_mov_b32 v{vT}, 0x3f803f80
  v_and_b32 v{vT+1}, 1, v{vLane}
  v_mul_u32_u24 v{vT+1}, 0xa, v{vT+1}
  v_add_u32 v{vT+1}, 4, v{vT+1}
  v_mul_u32_u24 v{vIdx}, 0x1111, v{vT+1}
  v_lshl_or_b32 v{vIdx}, v{vIdx}, 16, v{vIdx}
  v_cndmask_b32 v{vT+1}, 0, v{vT}, vcc
  v_cndmask_b32 v{vT}, 0, v{vT}, s[{s_t}:{s_t+1}]""")
        for q in range(2): E(f"  v_accvgpr_write_b32 a{aOnesS+q}, v{vT+1}")
        for q in range(2): E(f"  v_accvgpr_write_b32 a{aOnesS+2+q}, v{vT}")
        for x in "ab":
            for q in range(4): E(f"  v_accvgpr_write_b32 a{aL[x]+q}, 0")
    def wait_chunk(c):
        E(f"  s_waitcnt vmcnt({nvm[0]-marks[c]})")
    wait_chunk(0)
    E("  s_barrier")
    stamp(1)
    def rd(kind, t):
        c, s = t // 4, t % 4
        base = vR0 if (c % 4) < 2 else vR1
        off = (c % 2)*32768 + s*8192 + (2048 if kind == "V" else 0)
        dst = (aV if kind == "V" else aK)[t & 1]
        return [f"  ds_read_b128 a[{dst+4*j}:{dst+4*j+3}], v{base} offset:{off+1024*j}" for j in range(2)]
    def mS(x, t, j):
        c = "0" if j == 0 else f"v[{vS[x]}:{vS[x]+15}]"
        k = aK[t & 1] + 4*j; q = aQ[x] + 4*j
        return f"  v_mfma_f32_32x32x16_bf16 v[{vS[x]}:{vS[x]+15}], a[{k}:{k+3}], a[{q}:{q+3}], {c}"
    def mO(x, t, j):
        o = aO[x]; c = "0" if (t == 0 and j == 0) else f"a[{o}:{o+15}]"
        v = aV[t & 1] + 4*j; p = vP[x] + 4*j
        return f"  v_mfma_f32_32x32x16_bf16 a[{o}:{o+15}], a[{v}:{v+3}], v[{p}:{p+3}], {c}"
    def mL(x, t, j):
        if smf:
            if j == 0: return None
            o = aL[x]; p = vP[x]
            return f"  v_smfmac_f32_16x16x64_bf16 a[{o}:{o+3}], a[{aOnesS}:{aOnesS+3}], v[{p}:{p+7}], v{vIdx}"
        o = aL[x]; c = "0" if (t == 0 and j == 0) else f"a[{o}:{o+3}]"
        p = vP[x] + 4*j
        return f"  v_mfma_f32_16x16x32_bf16 a[{o}:{o+3}], a[{aOnes}:{aOnes+3}], v[{p}:{p+3}], {c}"
    def phase(x, y, M, extra, carry, last=False):
        e = lambda i: f"  v_exp_f32 v{vS[x]+i}, v{vS[x]+i}"
        c = lambda k: f"  v_cvt_pk_bf16_f32 v{vP[x]+k}, v{vS[x]+2*k}, v{vS[x]+2*k+1}"
        cy = lambda k: f"  v_cvt_pk_bf16_f32 v{vP[y]+k}, v{vS[y]+2*k}, v{vS[y]+2*k+1}"
        if order == 0:
            seq = ["O0"] + ([cy(6), cy(7)] if carry else []) + [e(0), e(1), e(2), "S0", e(3), e(4), e(5), c(0), c(1), "L0", e(6), e(7),
                   "S1", e(8), e(9), e(10), c(2), c(3), "O1", e(11), e(12), e(13), c(4), c(5), "L1", e(14), e(15)]
        elif order == 1:
            seq = ["O0"] + ([cy(6), cy(7)] if carry else []) + [e(0), e(1), e(2), "S0", e(3), e(4), c(0), e(5), c(1), "L0", e(6), e(7),
                   "O1", e(8), c(2), e(9), e(10), c(3), "S1", e(11), c(4), e(12), e(13), c(5), "L1", e(14), e(15)]
        if smf:
            if order == 0:
                seq = ["O0"] + ([cy(6), cy(7)] if carry else []) + [e(0), e(1), e(2), "S0", e(3), e(4), e(5), c(0), c(1), "L1", e(6), e(7), e(8), c(2),
                       c(3), "S1", e(9), e(10), e(11), c(4), c(5), "O1", e(12), e(13), e(14), e(15)]
            else:
                seq = ["O0"] + ([cy(6), cy(7)] if carry else []) + [e(0), e(1), e(2), "S0", e(3), e(4), e(5), c(0), c(1), "L1", e(6), e(7),
                       "S1", e(8), e(9), e(10), c(2), c(3), "O1", e(11), e(12), e(13), c(4), c(5), e(14), e(15)]
        if last: seq += ["  s_nop 0", c(6), c(7)]
        k = 0
        for it in seq:
            if it in ("S0", "S1", "O0", "O1", "L0", "L1"):
                if M.get(it): E(M[it])
                for z in extra.get(k, []):
                    if isinstance(z, tuple): emit_item(z)
                    else: E(z)
                k += 1
            else: E(it)
        for kk in sorted(extra):
            if kk >= k:
                for z in extra[kk]:
                    if isinstance(z, tuple): emit_item(z)
                    else: E(z)
    npl = [0]
    def xprio(p):
        npl[0] += 1
        E(f"  s_cmp_eq_u32 s{s_kh}, 0\n  s_cbranch_scc0 L_{name}_p{npl[0]}\n  s_setprio {p}")
        E(f"L_{name}_p{npl[0]}:", tr=False)
    if prio:
        E("  s_setprio 1"); xprio(2)
    if do_main:
        for z in rd("K", 0): E(z)
        E("  s_waitcnt lgkmcnt(0)")
        E(mS("a", 0, 0)); E(mS("a", 0, 1))
        E("  s_nop 7\n  s_nop 3")
        for t in range(32):
            if t % 4 == 3 and t < 31:
                c = (t+1)//4
                if do_bar:
                    if do_dma: wait_chunk(c)
                    E("  s_barrier")
                if do_dma and c >= 2 and c + 2 <= 7: dma_items(c+2, 2*t)
                if prio: xprio(2)
            if prio == 2 and (t % 4 == 2 and t < 30 or t == 31): xprio(0)
            ex = {}
            R = (rd("K", t+1) if t < 31 else []) + rd("V", t)
            if not do_rd: R = []
            for i, z in enumerate(R): ex.setdefault(i, []).append(z)
            for i, it in enumerate(pop(2*t, rate)): ex.setdefault(4+i if rate <= 2 else i, []).append(it)
            M = {"S0": mS("b", t, 0), "S1": mS("b", t, 1)}
            if t > 0: M.update(O0=mO("b", t-1, 0), L0=mL("b", t-1, 0), O1=mO("b", t-1, 1), L1=mL("b", t-1, 1))
            phase("a", "b", M, ex, carry=(t > 0))
            E("  s_waitcnt lgkmcnt(0)")
            if prio == 1 and (t % 4 == 2 and t < 30 or t == 31): xprio(0)
            M = dict(O0=mO("a", t, 0), L0=mL("a", t, 0), O1=mO("a", t, 1), L1=mL("a", t, 1))
            if t < 31: M.update(S0=mS("a", t+1, 0), S1=mS("a", t+1, 1))
            ex = {}
            for i, it in enumerate(pop(2*t+1, rate)): ex.setdefault(1+2*i if rate <= 2 else i, []).append(it)
            phase("b", "a", M, ex, carry=True, last=(t == 31))
        E("  s_nop 1")
        for z in (mO("b", 31, 0), mL("b", 31, 0), mO("b", 31, 1), mL("b", 31, 1)):
            if z: E(z)
    assert not Q, Q
    stamp(2)
    vO = 8; vX = 24; vLp = 7
    E(f"""  s_lshl_b32 s{s_t}, s{s_w}, 12
  v_add_u32 v{vR0}, s{s_t}, v{vL16}
  s_xor_b32 s{s_t+1}, s{s_t}, 0x4000
  v_add_u32 v{vR1}, s{s_t+1}, v{vL16}
  s_lshl_b32 s{s_t}, s{s_w}, 8
  s_add_u32 s{s_t}, s{s_t}, 0x8000
  s_xor_b32 s{s_t+1}, s{s_t}, 0x400
  v_lshlrev_b32 v{vT}, 2, v{vLane}
  v_add_u32 v{vT+1}, s{s_t+1}, v{vT}
  v_add_u32 v{vT}, s{s_t}, v{vT}
  s_nop 7
  s_cmp_eq_u32 s{s_kh}, 0
  s_cbranch_scc0 L_{name}_x1""")
    def xch(fin, snd):
        for q in range(4): E(f"  ds_write_b128 v{vR0}, a[{aO[snd]+4*q}:{aO[snd]+4*q+3}] offset:{1024*q}")
        if smf:
            E(f"  v_accvgpr_read_b32 v{vX}, a{aL[snd]}\n  v_accvgpr_read_b32 v{vX+1}, a{aL[snd]+1}\n  v_accvgpr_read_b32 v{vL}, a{aL[fin]}\n  v_accvgpr_read_b32 v{vX+2}, a{aL[fin]+1}")
            E(f"  v_add_f32 v{vX}, v{vX}, v{vX+1}\n  v_add_f32 v{vL}, v{vL}, v{vX+2}\n  ds_write_b32 v{vT}, v{vX}")
        else:
            E(f"  ds_write_b32 v{vT}, a{aL[snd]}")
            E(f"  v_accvgpr_read_b32 v{vL}, a{aL[fin]}")
        for r in range(16): E(f"  v_accvgpr_read_b32 v{vO+r}, a{aO[fin]+r}")
    cur[0] = [t_k0]; xch("a", "b")
    E(f"  s_branch L_{name}_x2"); E(f"L_{name}_x1:", tr=False)
    cur[0] = [t_k1]; xch("b", "a")
    E(f"L_{name}_x2:", tr=False)
    cur[0] = [t_k0, t_k1]
    E("  s_waitcnt lgkmcnt(0)\n  s_barrier")
    for q in range(4): E(f"  ds_read_b128 v[{vX+4*q}:{vX+4*q+3}], v{vR1} offset:{1024*q}")
    E(f"  ds_read_b32 v{vLp}, v{vT+1}")
    E("  s_waitcnt lgkmcnt(0)")
    E(f"  v_add_f32 v{vL}, v{vL}, v{vLp}")
    for r in range(16): E(f"  v_add_f32 v{vO+r}, v{vO+r}, v{vX+r}")
    E(f"  v_mov_b32 v{vT}, 0")
    for r in range(16): E(f"  v_fma_f32 v{vT}, v{vO+r}, 0, v{vT}")
    E(f"""  v_cmp_le_f32 vcc, 0x2b800000, v{vL}
  v_cmp_ge_f32 s[{s_t}:{s_t+1}], {hex(f2u(2.0**60))}, v{vL}""" if False else f"""  v_mov_b32 v{vT+1}, {hex(f2u(2.0**60))}
  v_cmp_le_f32 vcc, {hex(f2u(2.0**-40))}, v{vL}
  v_cmp_ge_f32 s[{s_t}:{s_t+1}], v{vT+1}, v{vL}
  v_cmp_eq_f32 s[{s_t+2}:{s_t+3}], 0, v{vT}
  s_nop 1
  s_and_b64 vcc, vcc, s[{s_t}:{s_t+1}]
  s_and_b64 vcc, vcc, s[{s_t+2}:{s_t+3}]
  s_cmp_eq_u64 vcc, -1""")
    if force_slow: E(f"  s_branch L_{name}_slow", tr=False)
    else: E(f"  s_cbranch_scc0 L_{name}_slow")
    E(f"L_{name}_fin:", tr=False)
    def scale_store(o, l, g, tile_s, kb_add):
        E(f"""  v_rcp_f32 v{vT}, v{l}
  s_lshl_b32 s{s_t}, s{tile_s}, 17
  s_add_u32 s{s_t+1}, s{s_head}, {kb_add}
  s_lshl_b32 s{s_t+1}, s{s_t+1}, 11
  s_add_u32 s{s_t}, s{s_t}, s{s_t+1}
  s_add_u32 s{s_t}, s{s_t}, {WS_O}
  v_mul_f32 v{vT}, v{vT}, v{g}""")
        for r in range(16): E(f"  v_mul_f32 v{o+r}, v{o+r}, v{vT}")
        for j in range(2):
            for r in range(4): E(f"  v_cvt_pk_bf16_f32 v{vP['a']+4*j+r}, v{o+8*j+2*r}, v{o+8*j+2*r+1}")
            E(f"  buffer_store_dwordx4 v[{vP['a']+4*j}:{vP['a']+4*j+3}], v{vL16}, s[{sWS}:{sWS+3}], s{s_t} offen offset:{1024*j} {st_flags}")
    E("  s_waitcnt vmcnt(0)")
    scale_store(vO, vL, bG, s_tf, 0)
    stamp(3)
    if do_attb:
        S0, S1 = 8, 24; n = 56
        E(f"""  v_and_b32 v{vT}, 31, v{vLane}
  v_lshrrev_b32 v{vT+1}, 5, v{vLane}
  v_lshlrev_b32 v{vT+1}, 2, v{vT+1}
  v_sub_u32 v{vT}, v{vT}, v{vT+1}
  v_add_u32 v{vT}, 18, v{vT}
  v_mov_b32 v58, 0x5555
  v_mov_b32 v59, 0
  v_lshlrev_b64 v[{n}:{n+1}], v{vT}, v[58:59]
  v_not_b32 v{n}, v{n}
  v_not_b32 v{n+1}, v{n+1}
  v_or_b32 v{n}, s{s_t0}, v{n}""")
        cr = lambda r: 8*(r//4) + r % 4
        for r in range(16):
            E(f"  v_bfe_i32 v{S0+r}, v{n+1}, {cr(r)}, 1\n  v_lshlrev_b32 v{S0+r}, 23, v{S0+r}")
        for r in range(8, 16):
            E(f"  v_bfe_i32 v{S1+r}, v{n}, {cr(r)}, 1\n  v_lshlrev_b32 v{S1+r}, 23, v{S1+r}")
        for r in range(8): E(f"  v_mov_b32 v{S1+r}, 0")
        E("  s_nop 1")
        for j in range(2): E(f"  v_mfma_f32_32x32x16_bf16 v[{S1}:{S1+15}], v[{bK1+4*j}:{bK1+4*j+3}], v[{bQ+4*j}:{bQ+4*j+3}], v[{S1}:{S1+15}]")
        for j in range(2): E(f"  v_mfma_f32_32x32x16_bf16 v[{S0}:{S0+15}], v[{bK0+4*j}:{bK0+4*j+3}], v[{bQ+4*j}:{bQ+4*j+3}], v[{S0}:{S0+15}]")
        E("  s_nop 7\n  s_nop 3")
        vals = [S1+r for r in range(8, 16)] + [S0+r for r in range(16)]
        m = 58
        E(f"  v_max3_f32 v{m}, v{vals[0]}, v{vals[1]}, v{vals[2]}")
        for i in range(3, 23, 2): E(f"  v_max3_f32 v{m}, v{vals[i]}, v{vals[i+1]}, v{m}")
        E(f"""  v_max_f32 v{m}, v{vals[23]}, v{m}
  v_mov_b32 v{m+1}, v{m}
  s_nop 1
  v_permlane32_swap_b32 v{m}, v{m+1}
  v_max_f32 v{m}, v{m}, v{m+1}""")
        for v in vals: E(f"  v_sub_f32 v{v}, v{v}, v{m}")
        for v in vals: E(f"  v_exp_f32 v{v}, v{v}")
        PB = 40
        E("  s_nop 0")
        for k in range(8): E(f"  v_cvt_pk_bf16_f32 v{PB+k}, v{S0+2*k}, v{S0+2*k+1}")
        for k in range(4): E(f"  v_cvt_pk_bf16_f32 v{PB+8+k}, v{S1+8+2*k}, v{S1+8+2*k+1}")
        E("  s_nop 1")
        oB = aO["a"]; lB = aL["a"]
        E(f"  v_mfma_f32_32x32x16_bf16 a[{oB}:{oB+15}], v[{bV0}:{bV0+3}], v[{PB}:{PB+3}], 0")
        E(f"  v_mfma_f32_16x16x32_bf16 a[{lB}:{lB+3}], a[{aOnes}:{aOnes+3}], v[{PB}:{PB+3}], 0")
        E(f"  v_mfma_f32_32x32x16_bf16 a[{oB}:{oB+15}], v[{bV0+4}:{bV0+7}], v[{PB+4}:{PB+7}], a[{oB}:{oB+15}]")
        E(f"  v_mfma_f32_16x16x32_bf16 a[{lB}:{lB+3}], a[{aOnes}:{aOnes+3}], v[{PB+4}:{PB+7}], a[{lB}:{lB+3}]")
        E(f"  v_mfma_f32_32x32x16_bf16 a[{oB}:{oB+15}], v[{bV1}:{bV1+3}], v[{PB+8}:{PB+11}], a[{oB}:{oB+15}]")
        E(f"  v_mfma_f32_16x16x32_bf16 a[{lB}:{lB+3}], a[{aOnes}:{aOnes+3}], v[{PB+8}:{PB+11}], a[{lB}:{lB+3}]")
        E("  s_nop 7\n  s_nop 3")
        for r in range(16): E(f"  v_accvgpr_read_b32 v{vO+r}, a{oB+r}")
        E(f"  v_accvgpr_read_b32 v{vL}, a{lB}")
        scale_store(vO, vL, bOMG, s_tb, 32)
    if stamps:
        E(f"""  s_memtime s[{s_st0+8}:{s_st0+9}]
  s_waitcnt vmcnt(0)
  s_memtime s[{s_st0+10}:{s_st0+11}]
  s_waitcnt lgkmcnt(0)
  v_mov_b32 v8, s{s_st0}
  v_mov_b32 v9, s{s_st0+2}
  v_mov_b32 v10, s{s_st0+4}
  v_mov_b32 v11, s{s_st0+6}
  v_mov_b32 v12, s{s_st0+8}
  v_mov_b32 v13, s{s_st0+10}
  s_lshl_b32 s{s_t+2}, s2, 3
  s_add_u32 s{s_t+2}, s{s_t+2}, s{s_w}
  s_lshl_b32 s{s_t+2}, s{s_t+2}, 5
  s_add_u32 s{s_t+2}, s{s_t+2}, {WS_STAMP}
  v_mov_b32 v14, 0
  buffer_store_dwordx4 v[8:11], v14, s[{sWS}:{sWS+3}], s{s_t+2} offen
  buffer_store_dwordx2 v[12:13], v14, s[{sWS}:{sWS+3}], s{s_t+2} offen offset:16""")
    E("  s_endpgm")
    t_s = []; TR["slow"] = t_s; cur[0] = [t_s]
    E(f"L_{name}_slow:", tr=False)
    sQ, sK, sV, sP, sM, sAl, sX = 40, 48, 102, 56, 110, 111, 112
    SS = 24
    E(f"""  s_lshl_b32 s{s_t}, s{s_head}, 17
  s_lshl_b32 s{s_t+1}, s{s_tf}, 11
  s_add_u32 s{s_t+1}, s{s_t+1}, s{s_t}
  s_add_u32 s{s_t+2}, s{s_t}, {QKV_TYPE}
  s_add_u32 s{s_t+3}, s{s_t}, {2*QKV_TYPE}
  buffer_load_dwordx4 v[{sQ}:{sQ+3}], v{vL16}, s[{sWS}:{sWS+3}], s{s_t+1} offen
  buffer_load_dwordx4 v[{sQ+4}:{sQ+7}], v{vL16}, s[{sWS}:{sWS+3}], s{s_t+1} offen offset:1024
  v_mov_b32 v{sM}, {hex(NEG_INF)}
  v_mov_b32 v{vL}, 0""")
    for r in range(16): E(f"  v_mov_b32 v{vO+r}, 0")
    E(f"  s_mov_b32 s{s_i}, 0")
    E(f"L_{name}_sloop:", tr=False)
    body = []; cur[0] = [body]
    E(f"""  buffer_load_dwordx4 v[{sK}:{sK+3}], v{vL16}, s[{sWS}:{sWS+3}], s{s_t+2} offen
  buffer_load_dwordx4 v[{sK+4}:{sK+7}], v{vL16}, s[{sWS}:{sWS+3}], s{s_t+2} offen offset:1024
  buffer_load_dwordx4 v[{sV}:{sV+3}], v{vL16}, s[{sWS}:{sWS+3}], s{s_t+3} offen
  buffer_load_dwordx4 v[{sV+4}:{sV+7}], v{vL16}, s[{sWS}:{sWS+3}], s{s_t+3} offen offset:1024
  s_add_u32 s{s_t+2}, s{s_t+2}, 2048
  s_add_u32 s{s_t+3}, s{s_t+3}, 2048
  s_waitcnt vmcnt(0)
  v_mfma_f32_32x32x16_bf16 v[{SS}:{SS+15}], v[{sK}:{sK+3}], v[{sQ}:{sQ+3}], 0
  v_mfma_f32_32x32x16_bf16 v[{SS}:{SS+15}], v[{sK+4}:{sK+7}], v[{sQ+4}:{sQ+7}], v[{SS}:{SS+15}]
  s_nop 7
  s_nop 7
  v_max3_f32 v{sX}, v{SS}, v{SS+1}, v{sM}""")
    for r in range(2, 16, 2): E(f"  v_max3_f32 v{sX}, v{SS+r}, v{SS+r+1}, v{sX}")
    E(f"""  v_mov_b32 v{sX+1}, v{sX}
  s_nop 1
  v_permlane32_swap_b32 v{sX}, v{sX+1}
  v_max_f32 v{sX}, v{sX}, v{sX+1}
  v_sub_f32 v{sAl}, v{sM}, v{sX}
  v_exp_f32 v{sAl}, v{sAl}
  v_mov_b32 v{sM}, v{sX}
  s_nop 0
  v_mul_f32 v{vL}, v{vL}, v{sAl}""")
    for r in range(16): E(f"  v_sub_f32 v{SS+r}, v{SS+r}, v{sM}")
    for r in range(16): E(f"  v_exp_f32 v{SS+r}, v{SS+r}")
    E("  s_nop 0")
    for r in range(16): E(f"  v_add_f32 v{vL}, v{vL}, v{SS+r}")
    for r in range(16): E(f"  v_mul_f32 v{vO+r}, v{vO+r}, v{sAl}")
    for k in range(8): E(f"  v_cvt_pk_bf16_f32 v{sP+k}, v{SS+2*k}, v{SS+2*k+1}")
    E(f"""  s_nop 1
  v_mfma_f32_32x32x16_bf16 v[{vO}:{vO+15}], v[{sV}:{sV+3}], v[{sP}:{sP+3}], v[{vO}:{vO+15}]
  v_mfma_f32_32x32x16_bf16 v[{vO}:{vO+15}], v[{sV+4}:{sV+7}], v[{sP+4}:{sP+7}], v[{vO}:{vO+15}]
  s_nop 7
  s_nop 7
  s_add_u32 s{s_i}, s{s_i}, 1
  s_cmp_lt_u32 s{s_i}, 64
  s_cbranch_scc1 L_{name}_sloop""")
    t_s += body + body
    cur[0] = [t_s]
    E(f"""  v_mov_b32 v{sX}, v{vL}
  s_nop 1
  v_permlane32_swap_b32 v{vL}, v{sX}
  v_add_f32 v{vL}, v{vL}, v{sX}
  s_branch L_{name}_fin""")
    cur[0] = None
    E(f"L_{name}_end:", tr=False)
    E("  s_endpgm")
    TR["k0"] = t_k0; TR["k1"] = t_k1
    src = kernel_header(name) + "\n".join(P) + "\n" + kernel_footer(name, 256, 128)
    return src, TR

if __name__ == "__main__":
    src, TR = gen_att()
    for k, T in TR.items(): lint(T, "att_"+k)
    open("att.s", "w").write('.amdgcn_target "amdgcn-amd-amdhsa--gfx950"\n' + src)
```

```python
S = 2048; D = 1024; H = 32; DH = 32
KA_AX, KA_AWQKV, KA_AWO, KA_BX, KA_BWQKV, KA_BWO, KA_GW, KA_OUT, KA_DBG, KA_WS = [8*i for i in range(10)]
WS_QKV = 0
QKV_TILE = 2048
QKV_HEAD = 64*QKV_TILE
QKV_TYPE = 32*QKV_HEAD
QKV_BR = 3*QKV_TYPE
WS_O = 2*QKV_BR
O_TILE = 64*2048
WS_G = WS_O + 64*O_TILE
WS_STAMP = WS_G + 65536
WS_SIZE = 0x3000000
LOG2E = 1.4426950408889634
QSCALE = (DH ** -0.5) * LOG2E

import struct
def f2u(x): return struct.unpack("<I", struct.pack("<f", x))[0]

def kernel_header(name):
    return f""".text
.globl {name}
.p2align 8
.type {name},@function
{name}:
"""
def kernel_footer(name, nvgpr, accum, nsgpr=96):
    return f""".section .rodata,"a"
.p2align 6
.amdhsa_kernel {name}
  .amdhsa_next_free_vgpr {nvgpr}
  .amdhsa_next_free_sgpr {nsgpr}
  .amdhsa_accum_offset {accum}
  .amdhsa_group_segment_fixed_size 0
  .amdhsa_kernarg_size 80
  .amdhsa_user_sgpr_count 2
  .amdhsa_user_sgpr_kernarg_segment_ptr 1
  .amdhsa_system_sgpr_workgroup_id_x 1
  .amdhsa_float_denorm_mode_32 3
.end_amdhsa_kernel
.text
"""
def srd(dst, ptr, nbytes):
    return f"""  s_mov_b32 s{dst}, s{ptr}
  s_and_b32 s{dst+1}, s{ptr+1}, 0xffff
  s_mov_b32 s{dst+2}, {hex(nbytes)}
  s_mov_b32 s{dst+3}, 0x20000
"""
```

```python
from common import *
from asmdsl import *

XSLOT = 32768; NXS = 3
WBASE = NXS*XSLOT; WSLOT = 12288; NWS = 5
G1_LDS = WBASE + NWS*WSLOT

def gen_g1b(name="qkv_kernel", do_mfma=True, do_dma=True, do_ds=True, stamps=False, do_store=True, st_flags="",
            pfd=5, do_pf=True, do_gate=True, same_tile=False):
    P = []; TR = {}
    cur = [None]
    def E(s, tr=True):
        for l in s.split("\n"):
            if l.strip() == "": continue
            P.append(l)
            if tr and cur[0] is not None: cur[0].append(l)
    common_tr = []
    cur[0] = common_tr
    sX, sW, sWS = 8, 12, 16
    s_w, s_wm, s_wn = 20, 21, 22
    s_mt, s_hp, s_br = 23, 24, 25
    s_omt, s_ohp = 26, 27
    s_k, s_m0, s_cnt = 28, 29, 30
    s_st0 = 40
    s_t = 48
    vLane = 1
    E(f"  s_cmp_ge_u32 s2, 256\n  s_cbranch_scc1 L_{name}_end")
    E(f"""  s_load_dwordx4 s[4:7], s[0:1], {KA_AX}
  s_load_dwordx2 s[38:39], s[0:1], {KA_BWQKV}
  s_load_dwordx2 s[34:35], s[0:1], {KA_WS}
  s_load_dwordx2 s[32:33], s[0:1], {KA_GW}
  v_and_b32 v{vLane}, 63, v0
  v_lshrrev_b32 v2, 6, v0
  s_and_b32 s{s_t}, s2, 7
  v_readfirstlane_b32 s{s_w}, v2
  s_lshr_b32 s{s_br}, s{s_t}, 2
  s_and_b32 s{s_t}, s{s_t}, 3
  s_lshr_b32 s3, s2, 3
  s_and_b32 s{s_mt}, s{s_t}, 1
  s_lshl_b32 s{s_mt}, s{s_mt}, 2
  s_and_b32 s{s_hp}, s3, 3
  s_add_u32 s{s_mt}, s{s_mt}, s{s_hp}
  s_lshr_b32 s{s_hp}, s{s_t}, 1
  s_lshl_b32 s{s_hp}, s{s_hp}, 3
  s_lshr_b32 s3, s3, 2
  s_add_u32 s{s_hp}, s{s_hp}, s3
  s_mov_b32 s{s_omt}, s{s_mt}
  s_mov_b32 s{s_ohp}, s{s_hp}""")
    if same_tile: E(f"  s_mov_b32 s{s_mt}, 0\n  s_mov_b32 s{s_hp}, 0")
    E(f"""  s_waitcnt lgkmcnt(0)
  s_mov_b32 s30, s4
  s_mov_b32 s31, s5
  s_cmp_eq_u32 s{s_br}, 0
  s_cselect_b32 s6, s6, s38
  s_cselect_b32 s7, s7, s39""")
    E(srd(sX, 4, S*D*2)); E(srd(sW, 6, D*3*D*2)); E(srd(sWS, 34, WS_SIZE))
    if stamps: E(f"  s_memtime s[{s_st0}:{s_st0+1}]")
    E(f"""  s_cmp_eq_u32 s{s_w}, 7
  s_cbranch_scc1 L_{name}_pf
  s_cmp_eq_u32 s{s_w}, 6
  s_cbranch_scc1 L_{name}_wl
  s_cmp_ge_u32 s{s_w}, 4
  s_cbranch_scc1 L_{name}_xl""")
    NB = 32
    tr = list(common_tr); TR["compute"] = tr; cur[0] = tr
    vXa = 2
    vWa = 6
    vT = 7
    vF = 8
    def FX(st, mi): return vF + 28*st + 4*mi
    def FW(st, t): return vF + 28*st + 16 + 4*t
    ACC = lambda mi, t: 16*(3*mi + t)
    a_, b_, c_ = vF, vF+1, vF+2
    E(f"""  s_lshr_b32 s{s_wm}, s{s_w}, 1
  s_and_b32 s{s_wn}, s{s_w}, 1
  v_and_b32 v{a_}, 31, v{vLane}
  s_lshl_b32 s{s_t}, s{s_wm}, 7
  v_add_u32 v{a_}, s{s_t}, v{a_}
  v_lshlrev_b32 v{a_}, 7, v{a_}
  v_lshrrev_b32 v{b_}, 5, v{vLane}
  v_bfe_u32 v{c_}, v{vLane}, 1, 3
  v_xor_b32 v{b_}, v{b_}, v{c_}
  v_lshlrev_b32 v{b_}, 4, v{b_}""")
    for j in range(4):
        E(f"  v_xor_b32 v{c_}, {32*j}, v{b_}\n  v_add_u32 v{vXa+j}, v{a_}, v{c_}")
    E(f"""  v_lshrrev_b32 v{a_}, 5, v{vLane}
  v_mul_u32_u24 v{a_}, 3072, v{a_}
  v_bfe_u32 v{b_}, v{vLane}, 2, 2
  v_lshlrev_b32 v{c_}, 7, v{b_}
  v_lshrrev_b32 v{b_}, 1, v{b_}
  v_xor_b32 v{b_}, s{s_wn}, v{b_}
  v_lshlrev_b32 v{b_}, 6, v{b_}
  v_add3_u32 v{a_}, v{a_}, v{b_}, v{c_}
  v_bfe_u32 v{b_}, v{vLane}, 4, 1
  v_lshlrev_b32 v{b_}, 5, v{b_}
  v_and_b32 v{c_}, 3, v{vLane}
  v_lshlrev_b32 v{c_}, 3, v{c_}
  v_add3_u32 v{a_}, v{a_}, v{b_}, v{c_}
  v_add_u32 v{vWa}, {WBASE}, v{a_}
  v_lshlrev_b32 v{vT}, 4, v{vLane}""")
    xs = [0]; ws_ = [0]
    def reads(step, st):
        s = step // 4; j = step % 4; hs = step // 2; jj = step % 2
        adj = []
        xslot = s % NXS; wslot = hs % NWS
        if xslot != xs[0]:
            d = (xslot - xs[0]) * XSLOT
            for q in range(4): adj.append(f"  v_add_u32 v{vXa+q}, {d & 0xffffffff:#x}, v{vXa+q}")
            xs[0] = xslot
        if wslot != ws_[0]:
            d = (wslot - ws_[0]) * WSLOT
            adj.append(f"  v_add_u32 v{vWa}, {d & 0xffffffff:#x}, v{vWa}")
            ws_[0] = wslot
        L = []
        def wr(t):
            for p in range(2):
                L.append(f"  ds_read_b64_tr_b16 v[{FW(st,t)+2*p}:{FW(st,t)+2*p+1}], v{vWa} offset:{6144*jj + 1536*p + 512*t}")
        def xr(mi):
            L.append(f"  ds_read_b128 v[{FX(st,mi)}:{FX(st,mi)+3}], v{vXa+j} offset:{4096*mi}")
        wr(0); xr(0); wr(1); wr(2); xr(1); xr(2); xr(3)
        return adj, L
    def mfmas(st, first):
        L = []
        for mi in range(4):
            for t in range(3):
                a, b = (FW(st,t), FX(st,mi)) if t < 2 else (FX(st,mi), FW(st,t))
                c = ACC(mi, t)
                cs = "0" if first else f"a[{c}:{c+15}]"
                L.append(f"  v_mfma_f32_32x32x16_bf16 a[{c}:{c+15}], v[{a}:{a+3}], v[{b}:{b+3}], {cs}")
        return L
    E("  s_barrier")
    if stamps: E(f"  s_memtime s[{s_st0+2}:{s_st0+3}]\n  s_waitcnt lgkmcnt(0)")
    if do_ds:
        adj, L = reads(0, 0)
        for x in adj + L: E(x)
        E("  s_waitcnt lgkmcnt(0)")
    for step in range(64):
        st = step & 1
        M = mfmas(st, step == 0) if do_mfma else []
        if step % 2 == 1 and step < 63: E("  s_barrier")
        adj, R = ([], [])
        if step < 63 and do_ds: adj, R = reads(step+1, st ^ 1)
        gaps = [[] for _ in range(12)]
        R2 = adj + R
        gi = 0
        if adj:
            gaps[0] += adj; gi = 1
        for k in range(0, len(R), 2):
            gaps[gi] += R[k:k+2]; gi += 1
        for k in range(12):
            if M: E(M[k])
            for x in gaps[k]: E(x)
        if R: E("  s_waitcnt lgkmcnt(0)")
    if stamps: E(f"  s_memtime s[{s_st0+4}:{s_st0+5}]")
    E(f"""  s_mul_i32 s{s_t}, s{s_br}, {QKV_BR}
  s_lshl_b32 s{s_t+1}, s{s_ohp}, 1
  s_add_u32 s{s_t+1}, s{s_t+1}, s{s_wn}
  s_mul_i32 s{s_t+1}, s{s_t+1}, {QKV_HEAD}
  s_add_u32 s{s_t}, s{s_t}, s{s_t+1}
  s_lshl_b32 s{s_t+1}, s{s_omt}, 3
  s_lshl_b32 s{s_t+2}, s{s_wm}, 2
  s_add_u32 s{s_t+1}, s{s_t+1}, s{s_t+2}
  s_lshl_b32 s{s_t+1}, s{s_t+1}, 11
  s_add_u32 s{s_t}, s{s_t}, s{s_t+1}
  v_add_u32 v{vT}, s{s_t}, v{vT}
  s_mov_b32 s{s_t+3}, {hex(f2u(QSCALE))}
  s_nop 7""")
    if do_store:
        k = 0
        for mi in range(4):
            for t in range(3):
                c = ACC(mi, t)
                for j in range(2):
                    base = vF + 12*(k % 4); k += 1
                    for r in range(8): E(f"  v_accvgpr_read_b32 v{base+r}, a{c+8*j+r}")
                    if t == 0:
                        for r in range(8): E(f"  v_mul_f32 v{base+r}, s{s_t+3}, v{base+r}")
                    for r in range(4): E(f"  v_cvt_pk_bf16_f32 v{base+8+r}, v{base+2*r}, v{base+2*r+1}")
                    E(f"  s_mov_b32 s{s_t+4}, {t*QKV_TYPE + mi*2048 + j*1024}")
                    E(f"  buffer_store_dwordx4 v[{base+8}:{base+11}], v{vT}, s[{sWS}:{sWS+3}], s{s_t+4} offen {st_flags}")
    def stamp_out():
        E(f"""  s_memtime s[{s_st0+6}:{s_st0+7}]
  s_waitcnt vmcnt(0)
  s_memtime s[{s_t}:{s_t+1}]
  s_waitcnt lgkmcnt(0)
  v_mov_b32 v8, s{s_st0}
  v_mov_b32 v9, s{s_st0+2}
  v_mov_b32 v10, s{s_st0+4}
  v_mov_b32 v11, s{s_st0+6}
  v_mov_b32 v12, s{s_t}
  s_lshl_b32 s{s_t+2}, s2, 3
  s_add_u32 s{s_t+2}, s{s_t+2}, s{s_w}
  s_lshl_b32 s{s_t+2}, s{s_t+2}, 5
  s_add_u32 s{s_t+2}, s{s_t+2}, {WS_STAMP}
  v_mov_b32 v13, 0
  buffer_store_dwordx4 v[8:11], v13, s[{sWS}:{sWS+3}], s{s_t+2} offen
  buffer_store_dword v12, v13, s[{sWS}:{sWS+3}], s{s_t+2} offen offset:16""")
    if stamps: stamp_out()
    E("  s_endpgm")
    tr = list(common_tr); TR["xl"] = tr; cur[0] = tr
    E(f"L_{name}_xl:", tr=False)
    vo = 8
    E(f"""  s_sub_u32 s{s_wm}, s{s_w}, 4
  s_lshl_b32 s{s_t}, s{s_mt}, 8
  s_lshl_b32 s{s_t+1}, s{s_wm}, 7
  s_add_u32 s{s_t}, s{s_t}, s{s_t+1}
  v_lshrrev_b32 v2, 3, v{vLane}
  v_add_u32 v2, s{s_t}, v2
  v_lshlrev_b32 v2, 11, v2
  v_and_b32 v3, 7, v{vLane}
  v_lshrrev_b32 v4, 4, v{vLane}
  v_xor_b32 v3, v3, v4
  v_lshlrev_b32 v3, 4, v3
  v_add_u32 v4, v2, v3
  v_xor_b32 v3, 64, v3
  v_add_u32 v5, v2, v3
  s_lshl_b32 s{s_m0}, s{s_wm}, 14""")
    for i in range(16):
        E(f"  v_add_u32 v{vo+i}, {i*8*2048 - 1024*(i % 4)}, v{4+(i&1)}")
    def xdma(s):
        if not do_dma: return
        E(f"  s_movk_i32 s{s_k}, {128*s}")
        for i in range(16):
            if i % 4 == 0:
                E(f"  s_add_u32 m0, s{s_m0}, {(s % NXS)*XSLOT + 1024*i}\n  s_nop 0")
            off = f" offset:{1024*(i%4)}" if i % 4 else ""
            E(f"  buffer_load_dwordx4 v{vo+i}, s[{sX}:{sX+3}], s{s_k} offen{off} lds")
    xdma(0); xdma(1)
    if do_dma: E("  s_waitcnt vmcnt(16)")
    xdma(2)
    E("  s_barrier")
    for hs in range(31):
        if hs % 2 == 1:
            s = (hs+1)//2
            if do_dma:
                n_younger = 16 * len([x for x in (s+1,) if x <= 15])
                if s == 1: n_younger = 16
                E(f"  s_waitcnt vmcnt({n_younger})")
        E("  s_barrier")
        if hs % 2 == 1:
            s = (hs+1)//2
            if s + 2 <= 15: xdma(s+2)
    E("  s_endpgm")
    tr = list(common_tr); TR["wl"] = tr; cur[0] = tr
    E(f"L_{name}_wl:", tr=False)
    E(f"""  v_bfe_u32 v2, v{vLane}, 3, 2
  v_mul_u32_u24 v3, 6144, v2
  v_bfe_u32 v4, v{vLane}, 2, 1
  v_lshrrev_b32 v5, 1, v2
  v_xor_b32 v4, v4, v5
  v_lshlrev_b32 v4, 6, v4
  v_and_b32 v5, 3, v{vLane}
  v_lshlrev_b32 v5, 4, v5
  v_add3_u32 v3, v3, v4, v5
  s_lshl_b32 s{s_t}, s{s_hp}, 7
  v_add_u32 v3, s{s_t}, v3
  v_lshrrev_b32 v4, 5, v{vLane}""")
    for mm in range(12):
        a = lambda uu: (4*(uu//3))*6144 + (uu % 3)*2048
        A, B = a(2*mm), a(2*mm+1)
        E(f"  v_mul_u32_u24 v5, {B-A}, v4\n  v_add_u32 v5, {A - 1024*(mm % 4)}, v5\n  v_add_u32 v{vo+mm}, v5, v3")
    def wdma(hs):
        if not do_dma: return
        E(f"  s_mov_b32 s{s_k}, {32*6144*hs}")
        for mm in range(12):
            if mm % 4 == 0:
                E(f"  s_mov_b32 m0, {WBASE + (hs % NWS)*WSLOT + 1024*mm}\n  s_nop 0")
            off = f" offset:{1024*(mm%4)}" if mm % 4 else ""
            E(f"  buffer_load_dwordx4 v{vo+mm}, s[{sW}:{sW+3}], s{s_k} offen{off} lds")
    for hs in range(5): wdma(hs)
    if do_dma: E("  s_waitcnt vmcnt(48)")
    E("  s_barrier")
    for hs in range(31):
        if do_dma:
            younger = len([x for x in (hs+2, hs+3, hs+4) if x <= 31])
            E(f"  s_waitcnt vmcnt({12*younger})")
        E("  s_barrier")
        if hs + 5 <= 31: wdma(hs+5)
    E("  s_endpgm")
    tr = list(common_tr); TR["pf"] = tr; cur[0] = tr
    E(f"L_{name}_pf:", tr=False)
    E(f"""  s_lshl_b32 s{s_t}, s{s_mt}, 8
  s_and_b32 s{s_t+1}, s{s_hp}, 7
  s_lshl_b32 s{s_t+1}, s{s_t+1}, 5
  s_add_u32 s{s_t}, s{s_t}, s{s_t+1}
  v_add_u32 v2, s{s_t}, v{vLane}
  v_lshlrev_b32 v2, 11, v2
  v_mov_b32 v6, 0x7f000000
  v_cmp_gt_u32 vcc, 32, v{vLane}
  s_nop 1
  v_cndmask_b32 v2, v6, v2, vcc
  v_mul_u32_u24 v3, 0x5556, v{vLane}
  v_lshrrev_b32 v3, 16, v3
  v_mul_u32_u24 v4, 3, v3
  v_sub_u32 v4, v{vLane}, v4
  s_and_b32 s{s_t}, s{s_mt}, 3
  s_lshl_b32 s{s_t}, s{s_t}, 4
  v_add_u32 v3, s{s_t}, v3
  v_mul_u32_u24 v3, 6144, v3
  v_lshlrev_b32 v4, 11, v4
  s_lshl_b32 s{s_t}, s{s_hp}, 7
  v_add3_u32 v3, v3, v4, s{s_t}
  v_cmp_gt_u32 vcc, 48, v{vLane}
  s_nop 1
  v_cndmask_b32 v3, v6, v3, vcc""")
    def pfetch(s):
        if not do_pf or s > 15: return
        E(f"""  s_movk_i32 s{s_k}, {128*s}
  buffer_load_dword v4, v2, s[{sX}:{sX+3}], s{s_k} offen
  s_mov_b32 s{s_k}, {64*6144*s}
  buffer_load_dword v5, v3, s[{sW}:{sW+3}], s{s_k} offen""")
    for s in range(2, pfd+1): pfetch(s)
    E("  s_barrier")
    for hs in range(31):
        E("  s_barrier")
        if hs % 2 == 1:
            s = (hs+1)//2
            pfetch(s + pfd)
    if do_gate:
        sA = 60; sG = 64
        E(srd(sA, 30, S*D*2)); E(srd(sG, 32, D*2))
        E(f"""  s_waitcnt vmcnt(0)
  v_lshlrev_b32 v2, 5, v{vLane}
  s_lshl_b32 s{s_k}, s2, 14
  buffer_load_dwordx4 v[8:11], v2, s[{sG}:{sG+3}], 0 offen
  buffer_load_dwordx4 v[12:15], v2, s[{sG}:{sG+3}], 0 offen offset:16""")
        for r in range(4):
            E(f"""  buffer_load_dwordx4 v[{16+8*r}:{19+8*r}], v2, s[{sA}:{sA+3}], s{s_k} offen
  buffer_load_dwordx4 v[{20+8*r}:{23+8*r}], v2, s[{sA}:{sA+3}], s{s_k} offen offset:16
  s_add_u32 s{s_k}, s{s_k}, 2048""")
        gate_rows = []
        def gate_row(src, dstlane):
            E("  v_mov_b32 v6, 0")
            for q in range(8):
                E(f"""  v_lshlrev_b32 v3, 16, v{src+q}
  v_lshlrev_b32 v4, 16, v{8+q}
  v_mul_f32 v3, v3, v4
  v_and_b32 v5, 0xffff0000, v{src+q}
  v_and_b32 v4, 0xffff0000, v{8+q}
  v_mul_f32 v5, v5, v4
  v_cvt_pk_bf16_f32 v3, v3, v5
  v_lshlrev_b32 v4, 16, v3
  v_and_b32 v3, 0xffff0000, v3
  v_add_f32 v6, v6, v4
  v_add_f32 v6, v6, v3""")
            E(f"""  s_nop 1
  v_add_f32_dpp v6, v6, v6 quad_perm:[1,0,3,2] row_mask:0xf bank_mask:0xf
  s_nop 1
  v_add_f32_dpp v6, v6, v6 quad_perm:[2,3,0,1] row_mask:0xf bank_mask:0xf
  s_nop 1
  v_add_f32_dpp v6, v6, v6 row_half_mirror row_mask:0xf bank_mask:0xf
  s_nop 1
  v_add_f32_dpp v6, v6, v6 row_mirror row_mask:0xf bank_mask:0xf
  s_nop 1
  v_readlane_b32 s{s_t}, v6, 0
  v_readlane_b32 s{s_t+1}, v6, 16
  v_readlane_b32 s{s_t+2}, v6, 32
  v_readlane_b32 s{s_t+3}, v6, 48
  s_nop 1
  v_mov_b32 v3, s{s_t}
  v_add_f32 v3, s{s_t+1}, v3
  v_add_f32 v3, s{s_t+2}, v3
  v_add_f32 v3, s{s_t+3}, v3
  v_cmp_eq_u32 vcc, {dstlane}, v{vLane}
  s_nop 1
  v_cndmask_b32 v7, v7, v3, vcc""")
        E("  v_mov_b32 v7, 0\n  s_waitcnt vmcnt(0)")
        for r in range(4): gate_row(16+8*r, r)
        for r in range(4):
            E(f"""  buffer_load_dwordx4 v[{16+8*r}:{19+8*r}], v2, s[{sA}:{sA+3}], s{s_k} offen
  buffer_load_dwordx4 v[{20+8*r}:{23+8*r}], v2, s[{sA}:{sA+3}], s{s_k} offen offset:16
  s_add_u32 s{s_k}, s{s_k}, 2048""")
        E("  s_waitcnt vmcnt(0)")
        for r in range(4): gate_row(16+8*r, 4+r)
        E(f"""  v_cvt_pk_bf16_f32 v7, v7, v7
  v_lshlrev_b32 v7, 16, v7
  v_mul_f32 v3, {hex(f2u(-LOG2E))}, v7
  v_exp_f32 v3, v3
  s_nop 0
  v_add_f32 v3, 1.0, v3
  v_rcp_f32 v3, v3
  s_nop 0
  v_cvt_pk_bf16_f32 v3, v3, v3
  v_lshlrev_b32 v3, 16, v3
  v_sub_f32 v4, 1.0, v3
  v_cvt_pk_bf16_f32 v4, v4, v4
  v_lshlrev_b32 v4, 16, v4
  v_lshlrev_b32 v5, 2, v{vLane}
  s_lshl_b32 s{s_t}, s2, 5
  v_add_u32 v5, s{s_t}, v5
  v_mov_b32 v6, 0x7f000000
  v_cmp_gt_u32 vcc, 8, v{vLane}
  s_nop 1
  v_cndmask_b32 v5, v6, v5, vcc
  s_mov_b32 s{s_t}, {WS_G}
  s_add_u32 s{s_t+1}, s{s_t}, 8192
  buffer_store_dword v3, v5, s[{sWS}:{sWS+3}], s{s_t} offen
  buffer_store_dword v4, v5, s[{sWS}:{sWS+3}], s{s_t+1} offen""")
    E(f"L_{name}_end:", tr=False)
    E("  s_endpgm")
    src = kernel_header(name) + "\n".join(P) + "\n" + kernel_footer(name, 256, 64)
    return src, TR

if __name__ == "__main__":
    src, TR = gen_g1b()
    for k, T in TR.items(): lint(T, "g1b_"+k)
    open("g1b.s", "w").write('.amdgcn_target "amdgcn-amd-amdhsa--gfx950"\n' + src)
```

```python
from common import *
from asmdsl import *

def g3_lds(NS): return NS*4096

def gen_g3(name="proj_kernel", stamps=False, D=12, NS=24, st_flags="", do_mfma=True, do_ds=True, kb0=0):
    P = []; tr = []
    def E(s, t=True):
        for l in s.split("\n"):
            if l.strip() == "": continue
            P.append(l)
            if t: tr.append(l)
    assert NS >= D + 7
    sWS, sWA, sWB, sOUT = 8, 12, 16, 20
    s_w, s_mt, s_nt = 24, 25, 26
    s_o, s_so, s_l, s_k = 27, 28, 29, 30
    s_t = 32; s_st0 = 40
    vLane, vL16, vW, vRd = 1, 2, 3, 4
    vT = 5
    vWF = 8
    vO = 40
    NO = D + 1
    nv = vO + 8*NO
    accum = (nv + 3)//4*4
    E(f"  s_cmp_ge_u32 s2, 256\n  s_cbranch_scc1 L_{name}_end")
    E(f"""  s_load_dwordx2 s[4:5], s[0:1], {KA_WS}
  s_load_dwordx2 s[6:7], s[0:1], {KA_AWO}
  s_load_dwordx2 s[34:35], s[0:1], {KA_BWO}
  s_load_dwordx2 s[36:37], s[0:1], {KA_OUT}
  v_and_b32 v{vLane}, 63, v0
  v_lshrrev_b32 v{vT}, 6, v0
  s_and_b32 s{s_t}, s2, 7
  v_readfirstlane_b32 s{s_w}, v{vT}
  s_lshr_b32 s{s_t+1}, s2, 3
  s_lshr_b32 s{s_mt}, s{s_t}, 1
  s_lshl_b32 s{s_mt}, s{s_mt}, 2
  s_and_b32 s{s_nt}, s{s_t+1}, 3
  s_add_u32 s{s_mt}, s{s_mt}, s{s_nt}
  s_and_b32 s{s_nt}, s{s_t}, 1
  s_lshl_b32 s{s_nt}, s{s_nt}, 3
  s_lshr_b32 s{s_t+1}, s{s_t+1}, 2
  s_add_u32 s{s_nt}, s{s_nt}, s{s_t+1}
  v_lshlrev_b32 v{vL16}, 4, v{vLane}
  s_lshl_b32 s{s_o}, s{s_mt}, 2
  s_add_u32 s{s_o}, s{s_o}, s{s_w}
  s_lshl_b32 s{s_o}, s{s_o}, 17
  s_add_u32 s{s_o}, s{s_o}, {WS_O}
  s_lshl_b32 s{s_l}, s{s_w}, 10
  v_lshrrev_b32 v{vT}, 3, v{vLane}
  s_lshl_b32 s{s_t}, s{s_w}, 3
  v_add_u32 v{vW}, s{s_t}, v{vT}
  v_lshlrev_b32 v{vW}, 11, v{vW}
  v_and_b32 v{vT+1}, 7, v{vLane}
  v_bfe_u32 v{vT}, v{vLane}, 4, 1
  v_lshlrev_b32 v{vT}, 2, v{vT}
  v_xor_b32 v{vT}, v{vT}, v{vT+1}
  v_lshlrev_b32 v{vT}, 4, v{vT}
  s_lshl_b32 s{s_t}, s{s_nt}, 7
  v_add3_u32 v{vW}, v{vW}, v{vT}, s{s_t}
  v_lshrrev_b32 v{vT}, 5, v{vLane}
  v_lshlrev_b32 v{vRd}, 9, v{vT}
  v_bfe_u32 v{vT}, v{vLane}, 2, 2
  v_lshlrev_b32 v{vT+1}, 7, v{vT}
  v_add_u32 v{vRd}, v{vRd}, v{vT+1}
  v_lshrrev_b32 v{vT}, 1, v{vT}
  v_lshlrev_b32 v{vT}, 6, v{vT}
  v_bfe_u32 v{vT+1}, v{vLane}, 4, 1
  v_lshlrev_b32 v{vT+1}, 5, v{vT+1}
  v_add3_u32 v{vRd}, v{vRd}, v{vT}, v{vT+1}
  v_and_b32 v{vT}, 3, v{vLane}
  v_lshlrev_b32 v{vT}, 3, v{vT}
  v_add_u32 v{vRd}, v{vRd}, v{vT}
  v_xor_b32 v{vT+1}, 64, v{vRd}
  v_add_u32 v{vT+2}, 0x10000, v{vRd}
  s_waitcnt lgkmcnt(0)""")
    vR = {(0,0): vRd, (1,0): vT+1, (0,1): vT+2, (1,1): vT}
    E(f"  v_xor_b32 v{vT}, 64, v{vT+2}")
    E(srd(sWS, 4, WS_SIZE)); E(srd(sWA, 6, D_*D_*2)); E(srd(sWB, 34, D_*D_*2)); E(srd(sOUT, 36, S*D_*2))
    def stamp(i):
        if stamps: E(f"  s_memtime s[{s_st0+2*i}:{s_st0+2*i+1}]")
    stamp(0)
    nvm = [0]; mW = {}; mO = {}
    def issue(v):
        kw = v + D + 4; ko = v + D
        if 0 <= kw < 64:
            srdw = sWA if kw < 32 else sWB
            E(f"  s_add_u32 m0, s{s_l}, {(kw % NS)*4096}\n  s_mov_b32 s{s_k}, {(kw % 32)*32*2048}")
            E(f"  buffer_load_dwordx4 v{vW}, s[{srdw}:{srdw+3}], s{s_k} offen lds"); nvm[0] += 1; mW[kw] = nvm[0]
        if 0 <= ko < 64:
            r = vO + 8*(ko % NO)
            E(f"  s_add_u32 s{s_so}, s{s_o}, {ko*2048}")
            for j in range(2):
                E(f"  buffer_load_dwordx4 v[{r+4*j}:{r+4*j+3}], v{vL16}, s[{sWS}:{sWS+3}], s{s_so} offen offset:{1024*j}"); nvm[0] += 1
            mO[ko] = nvm[0]
    def waitv(m):
        n = nvm[0] - m
        assert n <= 63
        E(f"  s_waitcnt vmcnt({n})")
    def reads(kb):
        L = []
        slot = kb % NS; hi = 1 if slot*4096 >= 65536 else 0
        off0 = slot*4096 - hi*65536
        st = kb & 1
        for j in range(2):
            for nh in range(2):
                for p in range(2):
                    r = vWF + 16*st + 8*j + 4*nh + 2*p
                    L.append(f"  ds_read_b64_tr_b16 v[{r}:{r+1}], v{vR[(nh,hi)]} offset:{off0 + (4*j + 2*p)*512}")
        return L
    for v in range(-D-4, 0): issue(v)
    waitv(mW[3]); E("  s_barrier")
    stamp(1)
    for z in reads(0): E(z)
    for kb in range(64):
        st = kb & 1
        if kb % 4 == 3 and kb < 63:
            waitv(min(mW[min(kb+4, 63)], 10**9) if False else mW[kb+4]); E("  s_barrier")
        R = reads(kb+1) if (kb < 63 and do_ds) else []
        waitv(mO[kb])
        E(f"  s_waitcnt lgkmcnt(0)")
        o = vO + 8*(kb % NO)
        M = []
        for j in range(2):
            for nh in range(2):
                a = vWF + 16*st + 8*j + 4*nh
                c = "0" if (kb == 0 and j == 0) else f"a[{16*nh}:{16*nh+15}]"
                M.append(f"  v_mfma_f32_32x32x16_bf16 a[{16*nh}:{16*nh+15}], v[{a}:{a+3}], v[{o+4*j}:{o+4*j+3}], {c}")
        for q in range(4):
            if do_mfma: E(M[q])
            for z in R[2*q:2*q+2]: E(z)
            if q == 3: issue(kb)
    stamp(2)
    E(f"""  s_lshl_b32 s{s_t}, s{s_mt}, 2
  s_add_u32 s{s_t}, s{s_t}, s{s_w}
  s_lshl_b32 s{s_t}, s{s_t}, 16
  s_lshl_b32 s{s_t+1}, s{s_nt}, 7
  s_add_u32 s{s_t}, s{s_t}, s{s_t+1}
  v_and_b32 v8, 31, v{vLane}
  v_lshlrev_b32 v8, 11, v8
  v_lshrrev_b32 v9, 5, v{vLane}
  v_lshlrev_b32 v9, 4, v9
  v_add_u32 v8, v8, v9
  s_nop 7""")
    for nh in range(2):
        for k2 in range(2):
            base = 12 + 12*((2*nh + k2) % 2)
            for r in range(8): E(f"  v_accvgpr_read_b32 v{base+r}, a{16*nh + 8*k2 + r}")
            for r in range(4): E(f"  v_cvt_pk_bf16_f32 v{base+8+r}, v{base+2*r}, v{base+2*r+1}")
            E(f"  s_nop 1\n  v_permlane32_swap_b32 v{base+8}, v{base+10}\n  v_permlane32_swap_b32 v{base+9}, v{base+11}")
            E(f"  s_nop 1\n  buffer_store_dwordx4 v[{base+8}:{base+11}], v8, s[{sOUT}:{sOUT+3}], s{s_t} offen offset:{64*nh + 32*k2} {st_flags}")
    if stamps:
        E(f"""  s_memtime s[{s_st0+6}:{s_st0+7}]
  s_waitcnt vmcnt(0)
  s_memtime s[{s_st0+8}:{s_st0+9}]
  s_waitcnt lgkmcnt(0)
  v_mov_b32 v8, s{s_st0}
  v_mov_b32 v9, s{s_st0+2}
  v_mov_b32 v10, s{s_st0+4}
  v_mov_b32 v11, s{s_st0+6}
  v_mov_b32 v12, s{s_st0+8}
  s_lshl_b32 s{s_t+2}, s2, 3
  s_add_u32 s{s_t+2}, s{s_t+2}, s{s_w}
  s_lshl_b32 s{s_t+2}, s{s_t+2}, 5
  s_add_u32 s{s_t+2}, s{s_t+2}, {WS_STAMP}
  v_mov_b32 v14, 0
  buffer_store_dwordx4 v[8:11], v14, s[{sWS}:{sWS+3}], s{s_t+2} offen
  buffer_store_dword v12, v14, s[{sWS}:{sWS+3}], s{s_t+2} offen offset:16""")
    E(f"L_{name}_end:", False)
    E("  s_endpgm")
    src = kernel_header(name) + "\n".join(P) + "\n" + kernel_footer(name, accum + 32, accum)
    return src, {"g3": tr}, accum + 32
D_ = D if False else 1024

if __name__ == "__main__":
    src, TR, nv = gen_g3()
    for k, T in TR.items(): lint(T, k)
    open("g3.s", "w").write('.amdgcn_target "amdgcn-amd-amdhsa--gfx950"\n' + src)
```

```python
import sys, os
sys.path.insert(0, "gen")
from common import *
import g1b, att, g3, asmdsl
NAME = "gated_mix__mha_block__sliding_local_dilated__prompt"
HDR = open(f"cdna_kernels/{NAME}.s.ref").read().split("\n")
kern_comment = [l for l in HDR if l.startswith(";   offset") or l.startswith("; Kernarg")]

def build(out=None, g1kw=None, attkw=None, g3kw=None, lint=True):
    g1kw = dict(pfd=5) if g1kw is None else g1kw
    attkw = dict(smf=True) if attkw is None else attkw
    g3kw = dict() if g3kw is None else g3kw
    s1, T1 = g1b.gen_g1b(name="qkv_kernel", **g1kw)
    s2, T2 = att.gen_att(name="att_kernel", **attkw)
    s3, T3, nv3 = g3.gen_g3(name="proj_kernel", **g3kw)
    if lint:
        for nm, T in (("g1", T1), ("att", T2), ("g3", T3)):
            for k, t in T.items():
                e = asmdsl.lint(t, nm+"_"+k, verbose=False)
                assert not e, e[:3]
    NS = g3kw.get("NS", 24)
    txt = "\n".join(kern_comment) + "\n"
    txt += f"; @launch kernel=qkv_kernel grid=(256,1,1) block=(512,1,1) lds={g1b.G1_LDS}\n"
    txt += f"; @launch kernel=att_kernel grid=(256,1,1) block=(512,1,1) lds={att.ATT_LDS}\n"
    txt += f"; @launch kernel=proj_kernel grid=(256,1,1) block=(256,1,1) lds={g3.g3_lds(NS)}\n"
    txt += '.amdgcn_target "amdgcn-amd-amdhsa--gfx950"\n'
    txt += s1 + s2 + s3
    out = out or f"cdna_kernels/{NAME}.s"
    open(out, "w").write(txt)
    print("wrote", out, len(txt), "bytes")
if __name__ == "__main__":
    if len(sys.argv) > 1 and sys.argv[1] == "prof":
        build("prof.s", dict(pfd=5, prof=True), dict(smf=True, prof=True), dict(prof=True), lint=False)
    else: build()
```

```python
from common import *
from asmdsl import *

ATT_LDS = 131072
NEG_INF = 0xff800000

def gen_att(name="att_kernel", stamps=False, st_flags="", force_slow=False, do_attb=True, smf=False, do_main=True, do_bar=True, do_rd=True, do_dma=True, late=True, order=0, rate=2, prio=0, prof=False):
    P = []; TR = {}
    cur = [None]
    def E(s, tr=True):
        for l in s.split("\n"):
            if l.strip() == "": continue
            P.append(l)
            if tr and cur[0] is not None:
                for c in cur[0]: c.append(l)
    t_k0 = []; t_k1 = []
    cur[0] = [t_k0, t_k1]
    sWS = 8
    s_w, s_kh, s_qg, s_head, s_qb = 12, 13, 14, 15, 16
    s_g, s_l, s_so = 17, 18, 19
    s_t = 20
    s_q = 32; s_tf = 33; s_ob = 34; s_i = 35; s_tb = 36; s_t0 = 37
    s_st0 = 40
    vLane, vL16, vR0, vR1 = 1, 2, 3, 4
    vL = 5; vT = 6
    vS = {"a": 8, "b": 24}; vP = {"a": 40, "b": 48}
    aQ = {"a": 0, "b": 8}; aK = [16, 24]; aV = [32, 40]; aO = {"a": 48, "b": 64}; aL = {"a": 80, "b": 84}; aOnes = 88
    bQ, bK0, bK1, bV0, bV1, bOMG, bG, vG4 = 64, 72, 80, 88, 96, 100, 101, 116
    def stamp(i):
        if stamps: E(f"  s_memtime s[{s_st0+2*i}:{s_st0+2*i+1}]")
    E(f"  s_cmp_ge_u32 s2, 256\n  s_cbranch_scc1 L_{name}_end")
    if prof: E(prof_begin(1))
    E(f"""  s_load_dwordx2 s[4:5], s[0:1], {KA_WS}
  v_and_b32 v{vLane}, 63, v0
  v_lshrrev_b32 v{vT}, 6, v0
  s_and_b32 s{s_t}, s2, 7
  v_readfirstlane_b32 s{s_w}, v{vT}
  s_lshr_b32 s{s_t+1}, s2, 3
  s_and_b32 s{s_t+2}, s{s_t+1}, 3
  s_lshl_b32 s{s_head}, s{s_t}, 2
  s_add_u32 s{s_head}, s{s_head}, s{s_t+2}
  s_lshr_b32 s{s_qb}, s{s_t+1}, 2
  s_lshr_b32 s{s_kh}, s{s_w}, 2
  s_and_b32 s{s_qg}, s{s_w}, 3
  v_lshlrev_b32 v{vL16}, 4, v{vLane}
  s_lshl_b32 s{s_t}, s{s_head}, 17
  s_lshl_b32 s{s_t+1}, s{s_qb}, 3
  s_lshl_b32 s{s_t+2}, s{s_qg}, 1
  s_add_u32 s{s_t+1}, s{s_t+1}, s{s_t+2}
  s_add_u32 s{s_tf}, s{s_t+1}, s{s_kh}
  s_lshl_b32 s{s_t+1}, s{s_t+1}, 11
  s_add_u32 s{s_q}, s{s_t}, s{s_t+1}
  s_bfe_u32 s{s_t+2}, s{s_w}, 0x10001
  s_add_u32 s{s_t+2}, s{s_t+2}, 1
  s_mul_i32 s{s_t+2}, s{s_t+2}, {QKV_TYPE}
  s_add_u32 s{s_g}, s{s_t}, s{s_t+2}
  s_lshl_b32 s{s_t+2}, s{s_kh}, 16
  s_add_u32 s{s_g}, s{s_g}, s{s_t+2}
  s_and_b32 s{s_t+2}, s{s_w}, 1
  s_lshl_b32 s{s_t+2}, s{s_t+2}, 10
  s_add_u32 s{s_g}, s{s_g}, s{s_t+2}
  s_lshl_b32 s{s_l}, s{s_w}, 10
  s_lshl_b32 s{s_t+2}, s{s_kh}, 12
  v_add_u32 v{vR0}, s{s_t+2}, v{vL16}
  v_add_u32 v{vR1}, 0x10000, v{vR0}
  s_waitcnt lgkmcnt(0)""")
    E(srd(sWS, 4, WS_SIZE))
    stamp(0)
    nvm = [0]
    marks = {}
    def VM(s):
        E(s); nvm[0] += 1
    for x, o in (("a", 0), ("b", 2048)):
        for j in range(2):
            VM(f"  buffer_load_dwordx4 a[{aQ[x]+4*j}:{aQ[x]+4*j+3}], v{vL16}, s[{sWS}:{sWS+3}], s{s_q} offen offset:{o+1024*j}")
    Q = []
    def dma_items(c, earliest):
        for st in range(4):
            Q.append((earliest, [f"  s_add_u32 m0, s{s_l}, {(c % 4)*32768 + st*8192}", f"  s_add_u32 s{s_so}, s{s_g}, {(4*c+st)*2048}"],
                      f"  buffer_load_dwordx4 v{vL16}, s[{sWS}:{sWS+3}], s{s_so} offen lds", c if st == 3 else None))
    def pop(ph, n):
        out = []
        while n > 0 and Q and Q[0][0] <= ph:
            out.append(Q.pop(0)); n -= 1
        return out
    def emit_item(it):
        for l in it[1]: E(l)
        VM(it[2])
        if it[3] is not None: marks[it[3]] = nvm[0]
    dma_items(0, -1)
    for it in pop(-1, 99): emit_item(it)
    s_b = 52
    E(f"""  s_lshl_b32 s{s_tb}, s{s_qb}, 3
  s_add_u32 s{s_tb}, s{s_tb}, s{s_w}
  s_lshl_b32 s{s_t}, s{s_head}, 17
  s_add_u32 s{s_t}, s{s_t}, {QKV_BR}
  s_lshl_b32 s{s_b+1}, s{s_tb}, 11
  s_add_u32 s{s_b+1}, s{s_t}, s{s_b+1}
  s_cmp_eq_u32 s{s_tb}, 0
  s_cselect_b32 s{s_b+2}, 0, 2048
  s_cselect_b32 s{s_t0}, -1, 0
  s_sub_u32 s{s_b+2}, s{s_b+1}, s{s_b+2}
  s_add_u32 s{s_b+3}, s{s_b+1}, {QKV_TYPE}
  s_add_u32 s{s_b+4}, s{s_b+2}, {QKV_TYPE}
  s_add_u32 s{s_b+5}, s{s_b+1}, {2*QKV_TYPE}
  s_add_u32 s{s_b+6}, s{s_b+2}, {2*QKV_TYPE}
  v_and_b32 v{vT}, 31, v{vLane}
  v_lshlrev_b32 v{vG4}, 2, v{vT}
  s_lshl_b32 s{s_b+7}, s{s_tf}, 7
  s_add_u32 s{s_b+7}, s{s_b+7}, {WS_G}
  s_lshl_b32 s{s_b}, s{s_tb}, 7
  s_add_u32 s{s_b}, s{s_b}, {WS_G + 8192}""")
    dma_items(1, 0 if late else -1)
    dma_items(2, 2 if late else -1)
    dma_items(3, 6 if late else -1)
    eb = 10 if late else -1
    def bl(dst, sreg, off): Q.append((eb, [], f"  buffer_load_dwordx4 v[{dst}:{dst+3}], v{vL16}, s[{sWS}:{sWS+3}], s{sreg} offen offset:{off}", None))
    if do_attb:
        for j in range(2): bl(bQ+4*j, s_b+1, 1024*j)
        for j in range(2): bl(bK0+4*j, s_b+3, 1024*j)
        for j in range(2): bl(bK1+4*j, s_b+4, 1024*j)
        for j in range(2): bl(bV0+4*j, s_b+5, 1024*j)
        bl(bV1, s_b+6, 1024)
    Q.append((eb, [], f"  buffer_load_dword v{bG}, v{vG4}, s[{sWS}:{sWS+3}], s{s_b+7} offen", None))
    Q.append((eb, [], f"  buffer_load_dword v{bOMG}, v{vG4}, s[{sWS}:{sWS+3}], s{s_b} offen", None))
    if not late:
        for it in pop(-1, 99): emit_item(it)
    E(f"""  v_lshrrev_b32 v{vT}, 2, v{vLane}
  v_lshrrev_b32 v{vT+1}, 4, v{vLane}
  v_xor_b32 v{vT}, v{vT}, v{vT+1}
  v_and_b32 v{vT}, 1, v{vT}
  v_sub_u32 v{vT}, v{vT}, 1
  v_and_b32 v{vT}, 0x3f803f80, v{vT}""")
    for q in range(4): E(f"  v_accvgpr_write_b32 a{aOnes+q}, v{vT}")
    vIdx = 117; aOnesS = 92
    if smf:
        E(f"""  v_and_b32 v{vT}, 6, v{vLane}
  v_cmp_eq_u32 vcc, 0, v{vT}
  v_cmp_eq_u32 s[{s_t}:{s_t+1}], 4, v{vT}
  v_mov_b32 v{vT}, 0x3f803f80
  v_and_b32 v{vT+1}, 1, v{vLane}
  v_mul_u32_u24 v{vT+1}, 0xa, v{vT+1}
  v_add_u32 v{vT+1}, 4, v{vT+1}
  v_mul_u32_u24 v{vIdx}, 0x1111, v{vT+1}
  v_lshl_or_b32 v{vIdx}, v{vIdx}, 16, v{vIdx}
  v_cndmask_b32 v{vT+1}, 0, v{vT}, vcc
  v_cndmask_b32 v{vT}, 0, v{vT}, s[{s_t}:{s_t+1}]""")
        for q in range(2): E(f"  v_accvgpr_write_b32 a{aOnesS+q}, v{vT+1}")
        for q in range(2): E(f"  v_accvgpr_write_b32 a{aOnesS+2+q}, v{vT}")
        for x in "ab":
            for q in range(4): E(f"  v_accvgpr_write_b32 a{aL[x]+q}, 0")
    def wait_chunk(c):
        E(f"  s_waitcnt vmcnt({nvm[0]-marks[c]})")
    wait_chunk(0)
    E("  s_barrier")
    stamp(1)
    def rd(kind, t):
        c, s = t // 4, t % 4
        base = vR0 if (c % 4) < 2 else vR1
        off = (c % 2)*32768 + s*8192 + (2048 if kind == "V" else 0)
        dst = (aV if kind == "V" else aK)[t & 1]
        return [f"  ds_read_b128 a[{dst+4*j}:{dst+4*j+3}], v{base} offset:{off+1024*j}" for j in range(2)]
    def mS(x, t, j):
        c = "0" if j == 0 else f"v[{vS[x]}:{vS[x]+15}]"
        k = aK[t & 1] + 4*j; q = aQ[x] + 4*j
        return f"  v_mfma_f32_32x32x16_bf16 v[{vS[x]}:{vS[x]+15}], a[{k}:{k+3}], a[{q}:{q+3}], {c}"
    def mO(x, t, j):
        o = aO[x]; c = "0" if (t == 0 and j == 0) else f"a[{o}:{o+15}]"
        v = aV[t & 1] + 4*j; p = vP[x] + 4*j
        return f"  v_mfma_f32_32x32x16_bf16 a[{o}:{o+15}], a[{v}:{v+3}], v[{p}:{p+3}], {c}"
    def mL(x, t, j):
        if smf:
            if j == 0: return None
            o = aL[x]; p = vP[x]
            return f"  v_smfmac_f32_16x16x64_bf16 a[{o}:{o+3}], a[{aOnesS}:{aOnesS+3}], v[{p}:{p+7}], v{vIdx}"
        o = aL[x]; c = "0" if (t == 0 and j == 0) else f"a[{o}:{o+3}]"
        p = vP[x] + 4*j
        return f"  v_mfma_f32_16x16x32_bf16 a[{o}:{o+3}], a[{aOnes}:{aOnes+3}], v[{p}:{p+3}], {c}"
    def phase(x, y, M, extra, carry, last=False):
        e = lambda i: f"  v_exp_f32 v{vS[x]+i}, v{vS[x]+i}"
        c = lambda k: f"  v_cvt_pk_bf16_f32 v{vP[x]+k}, v{vS[x]+2*k}, v{vS[x]+2*k+1}"
        cy = lambda k: f"  v_cvt_pk_bf16_f32 v{vP[y]+k}, v{vS[y]+2*k}, v{vS[y]+2*k+1}"
        if order == 0:
            seq = ["O0"] + ([cy(6), cy(7)] if carry else []) + [e(0), e(1), e(2), "S0", e(3), e(4), e(5), c(0), c(1), "L0", e(6), e(7),
                   "S1", e(8), e(9), e(10), c(2), c(3), "O1", e(11), e(12), e(13), c(4), c(5), "L1", e(14), e(15)]
        elif order == 1:
            seq = ["O0"] + ([cy(6), cy(7)] if carry else []) + [e(0), e(1), e(2), "S0", e(3), e(4), c(0), e(5), c(1), "L0", e(6), e(7),
                   "O1", e(8), c(2), e(9), e(10), c(3), "S1", e(11), c(4), e(12), e(13), c(5), "L1", e(14), e(15)]
        if smf:
            if order == 0:
                seq = ["O0"] + ([cy(6), cy(7)] if carry else []) + [e(0), e(1), e(2), "S0", e(3), e(4), e(5), c(0), c(1), "L1", e(6), e(7), e(8), c(2),
                       c(3), "S1", e(9), e(10), e(11), c(4), c(5), "O1", e(12), e(13), e(14), e(15)]
            else:
                seq = ["O0"] + ([cy(6), cy(7)] if carry else []) + [e(0), e(1), e(2), "S0", e(3), e(4), e(5), c(0), c(1), "L1", e(6), e(7),
                       "S1", e(8), e(9), e(10), c(2), c(3), "O1", e(11), e(12), e(13), c(4), c(5), e(14), e(15)]
        if last: seq += ["  s_nop 0", c(6), c(7)]
        k = 0
        for it in seq:
            if it in ("S0", "S1", "O0", "O1", "L0", "L1"):
                if M.get(it): E(M[it])
                for z in extra.get(k, []):
                    if isinstance(z, tuple): emit_item(z)
                    else: E(z)
                k += 1
            else: E(it)
        for kk in sorted(extra):
            if kk >= k:
                for z in extra[kk]:
                    if isinstance(z, tuple): emit_item(z)
                    else: E(z)
    npl = [0]
    def xprio(p):
        npl[0] += 1
        E(f"  s_cmp_eq_u32 s{s_kh}, 0\n  s_cbranch_scc0 L_{name}_p{npl[0]}\n  s_setprio {p}")
        E(f"L_{name}_p{npl[0]}:", tr=False)
    if prio:
        E("  s_setprio 1"); xprio(2)
    if do_main:
        for z in rd("K", 0): E(z)
        E("  s_waitcnt lgkmcnt(0)")
        E(mS("a", 0, 0)); E(mS("a", 0, 1))
        E("  s_nop 7\n  s_nop 3")
        for t in range(32):
            if t % 4 == 3 and t < 31:
                c = (t+1)//4
                if do_bar:
                    if do_dma: wait_chunk(c)
                    E("  s_barrier")
                if do_dma and c >= 2 and c + 2 <= 7: dma_items(c+2, 2*t)
                if prio: xprio(2)
            if prio == 2 and (t % 4 == 2 and t < 30 or t == 31): xprio(0)
            ex = {}
            R = (rd("K", t+1) if t < 31 else []) + rd("V", t)
            if not do_rd: R = []
            for i, z in enumerate(R): ex.setdefault(i, []).append(z)
            for i, it in enumerate(pop(2*t, rate)): ex.setdefault(4+i if rate <= 2 else i, []).append(it)
            M = {"S0": mS("b", t, 0), "S1": mS("b", t, 1)}
            if t > 0: M.update(O0=mO("b", t-1, 0), L0=mL("b", t-1, 0), O1=mO("b", t-1, 1), L1=mL("b", t-1, 1))
            phase("a", "b", M, ex, carry=(t > 0))
            E("  s_waitcnt lgkmcnt(0)")
            if prio == 1 and (t % 4 == 2 and t < 30 or t == 31): xprio(0)
            M = dict(O0=mO("a", t, 0), L0=mL("a", t, 0), O1=mO("a", t, 1), L1=mL("a", t, 1))
            if t < 31: M.update(S0=mS("a", t+1, 0), S1=mS("a", t+1, 1))
            ex = {}
            for i, it in enumerate(pop(2*t+1, rate)): ex.setdefault(1+2*i if rate <= 2 else i, []).append(it)
            phase("b", "a", M, ex, carry=True, last=(t == 31))
        E("  s_nop 1")
        for z in (mO("b", 31, 0), mL("b", 31, 0), mO("b", 31, 1), mL("b", 31, 1)):
            if z: E(z)
    assert not Q, Q
    stamp(2)
    vO = 8; vX = 24; vLp = 7
    E(f"""  s_lshl_b32 s{s_t}, s{s_w}, 12
  v_add_u32 v{vR0}, s{s_t}, v{vL16}
  s_xor_b32 s{s_t+1}, s{s_t}, 0x4000
  v_add_u32 v{vR1}, s{s_t+1}, v{vL16}
  s_lshl_b32 s{s_t}, s{s_w}, 8
  s_add_u32 s{s_t}, s{s_t}, 0x8000
  s_xor_b32 s{s_t+1}, s{s_t}, 0x400
  v_lshlrev_b32 v{vT}, 2, v{vLane}
  v_add_u32 v{vT+1}, s{s_t+1}, v{vT}
  v_add_u32 v{vT}, s{s_t}, v{vT}
  s_nop 7
  s_cmp_eq_u32 s{s_kh}, 0
  s_cbranch_scc0 L_{name}_x1""")
    def xch(fin, snd):
        for q in range(4): E(f"  ds_write_b128 v{vR0}, a[{aO[snd]+4*q}:{aO[snd]+4*q+3}] offset:{1024*q}")
        if smf:
            E(f"  v_accvgpr_read_b32 v{vX}, a{aL[snd]}\n  v_accvgpr_read_b32 v{vX+1}, a{aL[snd]+1}\n  v_accvgpr_read_b32 v{vL}, a{aL[fin]}\n  v_accvgpr_read_b32 v{vX+2}, a{aL[fin]+1}")
            E(f"  v_add_f32 v{vX}, v{vX}, v{vX+1}\n  v_add_f32 v{vL}, v{vL}, v{vX+2}\n  ds_write_b32 v{vT}, v{vX}")
        else:
            E(f"  ds_write_b32 v{vT}, a{aL[snd]}")
            E(f"  v_accvgpr_read_b32 v{vL}, a{aL[fin]}")
        for r in range(16): E(f"  v_accvgpr_read_b32 v{vO+r}, a{aO[fin]+r}")
    cur[0] = [t_k0]; xch("a", "b")
    E(f"  s_branch L_{name}_x2"); E(f"L_{name}_x1:", tr=False)
    cur[0] = [t_k1]; xch("b", "a")
    E(f"L_{name}_x2:", tr=False)
    cur[0] = [t_k0, t_k1]
    E("  s_waitcnt lgkmcnt(0)\n  s_barrier")
    for q in range(4): E(f"  ds_read_b128 v[{vX+4*q}:{vX+4*q+3}], v{vR1} offset:{1024*q}")
    E(f"  ds_read_b32 v{vLp}, v{vT+1}")
    E("  s_waitcnt lgkmcnt(0)")
    E(f"  v_add_f32 v{vL}, v{vL}, v{vLp}")
    for r in range(16): E(f"  v_add_f32 v{vO+r}, v{vO+r}, v{vX+r}")
    E(f"  v_mov_b32 v{vT}, 0")
    for r in range(16): E(f"  v_fma_f32 v{vT}, v{vO+r}, 0, v{vT}")
    E(f"""  v_cmp_le_f32 vcc, 0x2b800000, v{vL}
  v_cmp_ge_f32 s[{s_t}:{s_t+1}], {hex(f2u(2.0**60))}, v{vL}""" if False else f"""  v_mov_b32 v{vT+1}, {hex(f2u(2.0**60))}
  v_cmp_le_f32 vcc, {hex(f2u(2.0**-40))}, v{vL}
  v_cmp_ge_f32 s[{s_t}:{s_t+1}], v{vT+1}, v{vL}
  v_cmp_eq_f32 s[{s_t+2}:{s_t+3}], 0, v{vT}
  s_nop 1
  s_and_b64 vcc, vcc, s[{s_t}:{s_t+1}]
  s_and_b64 vcc, vcc, s[{s_t+2}:{s_t+3}]
  s_cmp_eq_u64 vcc, -1""")
    if force_slow: E(f"  s_branch L_{name}_slow", tr=False)
    else: E(f"  s_cbranch_scc0 L_{name}_slow")
    E(f"L_{name}_fin:", tr=False)
    def scale_store(o, l, g, tile_s, kb_add):
        E(f"""  v_rcp_f32 v{vT}, v{l}
  s_lshl_b32 s{s_t}, s{tile_s}, 17
  s_add_u32 s{s_t+1}, s{s_head}, {kb_add}
  s_lshl_b32 s{s_t+1}, s{s_t+1}, 11
  s_add_u32 s{s_t}, s{s_t}, s{s_t+1}
  s_add_u32 s{s_t}, s{s_t}, {WS_O}
  v_mul_f32 v{vT}, v{vT}, v{g}""")
        for r in range(16): E(f"  v_mul_f32 v{o+r}, v{o+r}, v{vT}")
        for j in range(2):
            for r in range(4): E(f"  v_cvt_pk_bf16_f32 v{vP['a']+4*j+r}, v{o+8*j+2*r}, v{o+8*j+2*r+1}")
            E(f"  buffer_store_dwordx4 v[{vP['a']+4*j}:{vP['a']+4*j+3}], v{vL16}, s[{sWS}:{sWS+3}], s{s_t} offen offset:{1024*j} {st_flags}")
    E("  s_waitcnt vmcnt(0)")
    scale_store(vO, vL, bG, s_tf, 0)
    stamp(3)
    if do_attb:
        S0, S1 = 8, 24; n = 56
        E(f"""  v_and_b32 v{vT}, 31, v{vLane}
  v_lshrrev_b32 v{vT+1}, 5, v{vLane}
  v_lshlrev_b32 v{vT+1}, 2, v{vT+1}
  v_sub_u32 v{vT}, v{vT}, v{vT+1}
  v_add_u32 v{vT}, 18, v{vT}
  v_mov_b32 v58, 0x5555
  v_mov_b32 v59, 0
  v_lshlrev_b64 v[{n}:{n+1}], v{vT}, v[58:59]
  v_not_b32 v{n}, v{n}
  v_not_b32 v{n+1}, v{n+1}
  v_or_b32 v{n}, s{s_t0}, v{n}""")
        cr = lambda r: 8*(r//4) + r % 4
        for r in range(16):
            E(f"  v_bfe_i32 v{S0+r}, v{n+1}, {cr(r)}, 1\n  v_lshlrev_b32 v{S0+r}, 23, v{S0+r}")
        for r in range(8, 16):
            E(f"  v_bfe_i32 v{S1+r}, v{n}, {cr(r)}, 1\n  v_lshlrev_b32 v{S1+r}, 23, v{S1+r}")
        for r in range(8): E(f"  v_mov_b32 v{S1+r}, 0")
        E("  s_nop 1")
        for j in range(2): E(f"  v_mfma_f32_32x32x16_bf16 v[{S1}:{S1+15}], v[{bK1+4*j}:{bK1+4*j+3}], v[{bQ+4*j}:{bQ+4*j+3}], v[{S1}:{S1+15}]")
        for j in range(2): E(f"  v_mfma_f32_32x32x16_bf16 v[{S0}:{S0+15}], v[{bK0+4*j}:{bK0+4*j+3}], v[{bQ+4*j}:{bQ+4*j+3}], v[{S0}:{S0+15}]")
        E("  s_nop 7\n  s_nop 3")
        vals = [S1+r for r in range(8, 16)] + [S0+r for r in range(16)]
        m = 58
        E(f"  v_max3_f32 v{m}, v{vals[0]}, v{vals[1]}, v{vals[2]}")
        for i in range(3, 23, 2): E(f"  v_max3_f32 v{m}, v{vals[i]}, v{vals[i+1]}, v{m}")
        E(f"""  v_max_f32 v{m}, v{vals[23]}, v{m}
  v_mov_b32 v{m+1}, v{m}
  s_nop 1
  v_permlane32_swap_b32 v{m}, v{m+1}
  v_max_f32 v{m}, v{m}, v{m+1}""")
        for v in vals: E(f"  v_sub_f32 v{v}, v{v}, v{m}")
        for v in vals: E(f"  v_exp_f32 v{v}, v{v}")
        PB = 40
        E("  s_nop 0")
        for k in range(8): E(f"  v_cvt_pk_bf16_f32 v{PB+k}, v{S0+2*k}, v{S0+2*k+1}")
        for k in range(4): E(f"  v_cvt_pk_bf16_f32 v{PB+8+k}, v{S1+8+2*k}, v{S1+8+2*k+1}")
        E("  s_nop 1")
        oB = aO["a"]; lB = aL["a"]
        E(f"  v_mfma_f32_32x32x16_bf16 a[{oB}:{oB+15}], v[{bV0}:{bV0+3}], v[{PB}:{PB+3}], 0")
        E(f"  v_mfma_f32_16x16x32_bf16 a[{lB}:{lB+3}], a[{aOnes}:{aOnes+3}], v[{PB}:{PB+3}], 0")
        E(f"  v_mfma_f32_32x32x16_bf16 a[{oB}:{oB+15}], v[{bV0+4}:{bV0+7}], v[{PB+4}:{PB+7}], a[{oB}:{oB+15}]")
        E(f"  v_mfma_f32_16x16x32_bf16 a[{lB}:{lB+3}], a[{aOnes}:{aOnes+3}], v[{PB+4}:{PB+7}], a[{lB}:{lB+3}]")
        E(f"  v_mfma_f32_32x32x16_bf16 a[{oB}:{oB+15}], v[{bV1}:{bV1+3}], v[{PB+8}:{PB+11}], a[{oB}:{oB+15}]")
        E(f"  v_mfma_f32_16x16x32_bf16 a[{lB}:{lB+3}], a[{aOnes}:{aOnes+3}], v[{PB+8}:{PB+11}], a[{lB}:{lB+3}]")
        E("  s_nop 7\n  s_nop 3")
        for r in range(16): E(f"  v_accvgpr_read_b32 v{vO+r}, a{oB+r}")
        E(f"  v_accvgpr_read_b32 v{vL}, a{lB}")
        scale_store(vO, vL, bOMG, s_tb, 32)
    if stamps:
        E(f"""  s_memtime s[{s_st0+8}:{s_st0+9}]
  s_waitcnt vmcnt(0)
  s_memtime s[{s_st0+10}:{s_st0+11}]
  s_waitcnt lgkmcnt(0)
  v_mov_b32 v8, s{s_st0}
  v_mov_b32 v9, s{s_st0+2}
  v_mov_b32 v10, s{s_st0+4}
  v_mov_b32 v11, s{s_st0+6}
  v_mov_b32 v12, s{s_st0+8}
  v_mov_b32 v13, s{s_st0+10}
  s_lshl_b32 s{s_t+2}, s2, 3
  s_add_u32 s{s_t+2}, s{s_t+2}, s{s_w}
  s_lshl_b32 s{s_t+2}, s{s_t+2}, 5
  s_add_u32 s{s_t+2}, s{s_t+2}, {WS_STAMP}
  v_mov_b32 v14, 0
  buffer_store_dwordx4 v[8:11], v14, s[{sWS}:{sWS+3}], s{s_t+2} offen
  buffer_store_dwordx2 v[12:13], v14, s[{sWS}:{sWS+3}], s{s_t+2} offen offset:16""")
    if prof: E(prof_end(1))
    E("  s_endpgm")
    t_s = []; TR["slow"] = t_s; cur[0] = [t_s]
    E(f"L_{name}_slow:", tr=False)
    sQ, sK, sV, sP, sM, sAl, sX = 40, 48, 102, 56, 110, 111, 112
    SS = 24
    E(f"""  s_lshl_b32 s{s_t}, s{s_head}, 17
  s_lshl_b32 s{s_t+1}, s{s_tf}, 11
  s_add_u32 s{s_t+1}, s{s_t+1}, s{s_t}
  s_add_u32 s{s_t+2}, s{s_t}, {QKV_TYPE}
  s_add_u32 s{s_t+3}, s{s_t}, {2*QKV_TYPE}
  buffer_load_dwordx4 v[{sQ}:{sQ+3}], v{vL16}, s[{sWS}:{sWS+3}], s{s_t+1} offen
  buffer_load_dwordx4 v[{sQ+4}:{sQ+7}], v{vL16}, s[{sWS}:{sWS+3}], s{s_t+1} offen offset:1024
  v_mov_b32 v{sM}, {hex(NEG_INF)}
  v_mov_b32 v{vL}, 0""")
    for r in range(16): E(f"  v_mov_b32 v{vO+r}, 0")
    E(f"  s_mov_b32 s{s_i}, 0")
    E(f"L_{name}_sloop:", tr=False)
    body = []; cur[0] = [body]
    E(f"""  buffer_load_dwordx4 v[{sK}:{sK+3}], v{vL16}, s[{sWS}:{sWS+3}], s{s_t+2} offen
  buffer_load_dwordx4 v[{sK+4}:{sK+7}], v{vL16}, s[{sWS}:{sWS+3}], s{s_t+2} offen offset:1024
  buffer_load_dwordx4 v[{sV}:{sV+3}], v{vL16}, s[{sWS}:{sWS+3}], s{s_t+3} offen
  buffer_load_dwordx4 v[{sV+4}:{sV+7}], v{vL16}, s[{sWS}:{sWS+3}], s{s_t+3} offen offset:1024
  s_add_u32 s{s_t+2}, s{s_t+2}, 2048
  s_add_u32 s{s_t+3}, s{s_t+3}, 2048
  s_waitcnt vmcnt(0)
  v_mfma_f32_32x32x16_bf16 v[{SS}:{SS+15}], v[{sK}:{sK+3}], v[{sQ}:{sQ+3}], 0
  v_mfma_f32_32x32x16_bf16 v[{SS}:{SS+15}], v[{sK+4}:{sK+7}], v[{sQ+4}:{sQ+7}], v[{SS}:{SS+15}]
  s_nop 7
  s_nop 7
  v_max3_f32 v{sX}, v{SS}, v{SS+1}, v{sM}""")
    for r in range(2, 16, 2): E(f"  v_max3_f32 v{sX}, v{SS+r}, v{SS+r+1}, v{sX}")
    E(f"""  v_mov_b32 v{sX+1}, v{sX}
  s_nop 1
  v_permlane32_swap_b32 v{sX}, v{sX+1}
  v_max_f32 v{sX}, v{sX}, v{sX+1}
  v_sub_f32 v{sAl}, v{sM}, v{sX}
  v_exp_f32 v{sAl}, v{sAl}
  v_mov_b32 v{sM}, v{sX}
  s_nop 0
  v_mul_f32 v{vL}, v{vL}, v{sAl}""")
    for r in range(16): E(f"  v_sub_f32 v{SS+r}, v{SS+r}, v{sM}")
    for r in range(16): E(f"  v_exp_f32 v{SS+r}, v{SS+r}")
    E("  s_nop 0")
    for r in range(16): E(f"  v_add_f32 v{vL}, v{vL}, v{SS+r}")
    for r in range(16): E(f"  v_mul_f32 v{vO+r}, v{vO+r}, v{sAl}")
    for k in range(8): E(f"  v_cvt_pk_bf16_f32 v{sP+k}, v{SS+2*k}, v{SS+2*k+1}")
    E(f"""  s_nop 1
  v_mfma_f32_32x32x16_bf16 v[{vO}:{vO+15}], v[{sV}:{sV+3}], v[{sP}:{sP+3}], v[{vO}:{vO+15}]
  v_mfma_f32_32x32x16_bf16 v[{vO}:{vO+15}], v[{sV+4}:{sV+7}], v[{sP+4}:{sP+7}], v[{vO}:{vO+15}]
  s_nop 7
  s_nop 7
  s_add_u32 s{s_i}, s{s_i}, 1
  s_cmp_lt_u32 s{s_i}, 64
  s_cbranch_scc1 L_{name}_sloop""")
    t_s += body + body
    cur[0] = [t_s]
    E(f"""  v_mov_b32 v{sX}, v{vL}
  s_nop 1
  v_permlane32_swap_b32 v{vL}, v{sX}
  v_add_f32 v{vL}, v{vL}, v{sX}
  s_branch L_{name}_fin""")
    cur[0] = None
    E(f"L_{name}_end:", tr=False)
    E("  s_endpgm")
    TR["k0"] = t_k0; TR["k1"] = t_k1
    src = kernel_header(name) + "\n".join(P) + "\n" + kernel_footer(name, 256, 128, 100 if prof else 96)
    return src, TR

if __name__ == "__main__":
    src, TR = gen_att()
    for k, T in TR.items(): lint(T, "att_"+k)
    open("att.s", "w").write('.amdgcn_target "amdgcn-amd-amdhsa--gfx950"\n' + src)
```

```python
S = 2048; D = 1024; H = 32; DH = 32
KA_AX, KA_AWQKV, KA_AWO, KA_BX, KA_BWQKV, KA_BWO, KA_GW, KA_OUT, KA_DBG, KA_WS = [8*i for i in range(10)]
WS_QKV = 0
QKV_TILE = 2048
QKV_HEAD = 64*QKV_TILE
QKV_TYPE = 32*QKV_HEAD
QKV_BR = 3*QKV_TYPE
WS_O = 2*QKV_BR
O_TILE = 64*2048
WS_G = WS_O + 64*O_TILE
WS_STAMP = WS_G + 65536
WS_SIZE = 0x3000000
LOG2E = 1.4426950408889634
QSCALE = (DH ** -0.5) * LOG2E

import struct
def f2u(x): return struct.unpack("<I", struct.pack("<f", x))[0]

def kernel_header(name):
    return f""".text
.globl {name}
.p2align 8
.type {name},@function
{name}:
"""
def kernel_footer(name, nvgpr, accum, nsgpr=96):
    return f""".section .rodata,"a"
.p2align 6
.amdhsa_kernel {name}
  .amdhsa_next_free_vgpr {nvgpr}
  .amdhsa_next_free_sgpr {nsgpr}
  .amdhsa_accum_offset {accum}
  .amdhsa_group_segment_fixed_size 0
  .amdhsa_kernarg_size 80
  .amdhsa_user_sgpr_count 2
  .amdhsa_user_sgpr_kernarg_segment_ptr 1
  .amdhsa_system_sgpr_workgroup_id_x 1
  .amdhsa_float_denorm_mode_32 3
.end_amdhsa_kernel
.text
"""
def srd(dst, ptr, nbytes):
    return f"""  s_mov_b32 s{dst}, s{ptr}
  s_and_b32 s{dst+1}, s{ptr+1}, 0xffff
  s_mov_b32 s{dst+2}, {hex(nbytes)}
  s_mov_b32 s{dst+3}, 0x20000
"""

def prof_begin(kidx, sbase=84):
    b = sbase
    return f"""  s_load_dwordx2 s[{b}:{b+1}], s[0:1], {KA_DBG}
  s_memrealtime s[{b+2}:{b+3}]
  s_memtime s[{b+4}:{b+5}]
  s_waitcnt lgkmcnt(0)
  s_sub_u32 s{b}, s{b}, {512*kidx}
  s_subb_u32 s{b+1}, s{b+1}, 0
"""
def prof_end(kidx, sbase=84, v=2):
    b = sbase
    return f"""  s_waitcnt vmcnt(0)
  s_memrealtime s[{b+6}:{b+7}]
  s_memtime s[{b+8}:{b+9}]
  s_and_b32 s{b+1}, s{b+1}, 0xffff
  s_mov_b32 s{b+10}, s{b+2}
  s_mov_b32 s{b+11}, s{b+4}
  s_waitcnt lgkmcnt(0)
  s_sub_u32 s{b+11}, s{b+8}, s{b+11}
  s_mov_b32 s{b+2}, 256
  s_mov_b32 s{b+3}, 0x20000
  s_not_b32 s{b+10}, s{b+10}
  v_mov_b32 v{v}, s{b+10}
  v_mov_b32 v{v+1}, s{b+6}
  v_mov_b32 v{v+2}, s{b+11}
  v_mov_b32 v{v+3}, 0
  s_mov_b64 exec, 1
  buffer_atomic_umax v{v}, v{v+3}, s[{b}:{b+3}], 0 offen offset:{16*kidx}
  buffer_atomic_umax v{v+1}, v{v+3}, s[{b}:{b+3}], 0 offen offset:{16*kidx+4}
  buffer_atomic_umax v{v+2}, v{v+3}, s[{b}:{b+3}], 0 offen offset:{16*kidx+8}
"""
```

```python
from common import *
from asmdsl import *

XSLOT = 32768; NXS = 3
WBASE = NXS*XSLOT; WSLOT = 12288; NWS = 5
G1_LDS = WBASE + NWS*WSLOT

def gen_g1b(name="qkv_kernel", do_mfma=True, do_dma=True, do_ds=True, stamps=False, do_store=True, st_flags="",
            pfd=5, do_pf=True, do_gate=True, same_tile=False, prof=False):
    P = []; TR = {}
    cur = [None]
    def E(s, tr=True):
        for l in s.split("\n"):
            if l.strip() == "": continue
            P.append(l)
            if tr and cur[0] is not None: cur[0].append(l)
    common_tr = []
    cur[0] = common_tr
    sX, sW, sWS = 8, 12, 16
    s_w, s_wm, s_wn = 20, 21, 22
    s_mt, s_hp, s_br = 23, 24, 25
    s_omt, s_ohp = 26, 27
    s_k, s_m0, s_cnt = 28, 29, 30
    s_st0 = 40
    s_t = 48
    vLane = 1
    E(f"  s_cmp_ge_u32 s2, 256\n  s_cbranch_scc1 L_{name}_end")
    if prof: E(prof_begin(0))
    E(f"""  s_load_dwordx4 s[4:7], s[0:1], {KA_AX}
  s_load_dwordx2 s[38:39], s[0:1], {KA_BWQKV}
  s_load_dwordx2 s[34:35], s[0:1], {KA_WS}
  s_load_dwordx2 s[32:33], s[0:1], {KA_GW}
  v_and_b32 v{vLane}, 63, v0
  v_lshrrev_b32 v2, 6, v0
  s_and_b32 s{s_t}, s2, 7
  v_readfirstlane_b32 s{s_w}, v2
  s_lshr_b32 s{s_br}, s{s_t}, 2
  s_and_b32 s{s_t}, s{s_t}, 3
  s_lshr_b32 s3, s2, 3
  s_and_b32 s{s_mt}, s{s_t}, 1
  s_lshl_b32 s{s_mt}, s{s_mt}, 2
  s_and_b32 s{s_hp}, s3, 3
  s_add_u32 s{s_mt}, s{s_mt}, s{s_hp}
  s_lshr_b32 s{s_hp}, s{s_t}, 1
  s_lshl_b32 s{s_hp}, s{s_hp}, 3
  s_lshr_b32 s3, s3, 2
  s_add_u32 s{s_hp}, s{s_hp}, s3
  s_mov_b32 s{s_omt}, s{s_mt}
  s_mov_b32 s{s_ohp}, s{s_hp}""")
    if same_tile: E(f"  s_mov_b32 s{s_mt}, 0\n  s_mov_b32 s{s_hp}, 0")
    E(f"""  s_waitcnt lgkmcnt(0)
  s_mov_b32 s30, s4
  s_mov_b32 s31, s5
  s_cmp_eq_u32 s{s_br}, 0
  s_cselect_b32 s6, s6, s38
  s_cselect_b32 s7, s7, s39""")
    E(srd(sX, 4, S*D*2)); E(srd(sW, 6, D*3*D*2)); E(srd(sWS, 34, WS_SIZE))
    if stamps: E(f"  s_memtime s[{s_st0}:{s_st0+1}]")
    E(f"""  s_cmp_eq_u32 s{s_w}, 7
  s_cbranch_scc1 L_{name}_pf
  s_cmp_eq_u32 s{s_w}, 6
  s_cbranch_scc1 L_{name}_wl
  s_cmp_ge_u32 s{s_w}, 4
  s_cbranch_scc1 L_{name}_xl""")
    NB = 32
    tr = list(common_tr); TR["compute"] = tr; cur[0] = tr
    vXa = 2
    vWa = 6
    vT = 7
    vF = 8
    def FX(st, mi): return vF + 28*st + 4*mi
    def FW(st, t): return vF + 28*st + 16 + 4*t
    ACC = lambda mi, t: 16*(3*mi + t)
    a_, b_, c_ = vF, vF+1, vF+2
    E(f"""  s_lshr_b32 s{s_wm}, s{s_w}, 1
  s_and_b32 s{s_wn}, s{s_w}, 1
  v_and_b32 v{a_}, 31, v{vLane}
  s_lshl_b32 s{s_t}, s{s_wm}, 7
  v_add_u32 v{a_}, s{s_t}, v{a_}
  v_lshlrev_b32 v{a_}, 7, v{a_}
  v_lshrrev_b32 v{b_}, 5, v{vLane}
  v_bfe_u32 v{c_}, v{vLane}, 1, 3
  v_xor_b32 v{b_}, v{b_}, v{c_}
  v_lshlrev_b32 v{b_}, 4, v{b_}""")
    for j in range(4):
        E(f"  v_xor_b32 v{c_}, {32*j}, v{b_}\n  v_add_u32 v{vXa+j}, v{a_}, v{c_}")
    E(f"""  v_lshrrev_b32 v{a_}, 5, v{vLane}
  v_mul_u32_u24 v{a_}, 3072, v{a_}
  v_bfe_u32 v{b_}, v{vLane}, 2, 2
  v_lshlrev_b32 v{c_}, 7, v{b_}
  v_lshrrev_b32 v{b_}, 1, v{b_}
  v_xor_b32 v{b_}, s{s_wn}, v{b_}
  v_lshlrev_b32 v{b_}, 6, v{b_}
  v_add3_u32 v{a_}, v{a_}, v{b_}, v{c_}
  v_bfe_u32 v{b_}, v{vLane}, 4, 1
  v_lshlrev_b32 v{b_}, 5, v{b_}
  v_and_b32 v{c_}, 3, v{vLane}
  v_lshlrev_b32 v{c_}, 3, v{c_}
  v_add3_u32 v{a_}, v{a_}, v{b_}, v{c_}
  v_add_u32 v{vWa}, {WBASE}, v{a_}
  v_lshlrev_b32 v{vT}, 4, v{vLane}""")
    xs = [0]; ws_ = [0]
    def reads(step, st):
        s = step // 4; j = step % 4; hs = step // 2; jj = step % 2
        adj = []
        xslot = s % NXS; wslot = hs % NWS
        if xslot != xs[0]:
            d = (xslot - xs[0]) * XSLOT
            for q in range(4): adj.append(f"  v_add_u32 v{vXa+q}, {d & 0xffffffff:#x}, v{vXa+q}")
            xs[0] = xslot
        if wslot != ws_[0]:
            d = (wslot - ws_[0]) * WSLOT
            adj.append(f"  v_add_u32 v{vWa}, {d & 0xffffffff:#x}, v{vWa}")
            ws_[0] = wslot
        L = []
        def wr(t):
            for p in range(2):
                L.append(f"  ds_read_b64_tr_b16 v[{FW(st,t)+2*p}:{FW(st,t)+2*p+1}], v{vWa} offset:{6144*jj + 1536*p + 512*t}")
        def xr(mi):
            L.append(f"  ds_read_b128 v[{FX(st,mi)}:{FX(st,mi)+3}], v{vXa+j} offset:{4096*mi}")
        wr(0); xr(0); wr(1); wr(2); xr(1); xr(2); xr(3)
        return adj, L
    def mfmas(st, first):
        L = []
        for mi in range(4):
            for t in range(3):
                a, b = (FW(st,t), FX(st,mi)) if t < 2 else (FX(st,mi), FW(st,t))
                c = ACC(mi, t)
                cs = "0" if first else f"a[{c}:{c+15}]"
                L.append(f"  v_mfma_f32_32x32x16_bf16 a[{c}:{c+15}], v[{a}:{a+3}], v[{b}:{b+3}], {cs}")
        return L
    E("  s_barrier")
    if stamps: E(f"  s_memtime s[{s_st0+2}:{s_st0+3}]\n  s_waitcnt lgkmcnt(0)")
    if do_ds:
        adj, L = reads(0, 0)
        for x in adj + L: E(x)
        E("  s_waitcnt lgkmcnt(0)")
    for step in range(64):
        st = step & 1
        M = mfmas(st, step == 0) if do_mfma else []
        if step % 2 == 1 and step < 63: E("  s_barrier")
        adj, R = ([], [])
        if step < 63 and do_ds: adj, R = reads(step+1, st ^ 1)
        gaps = [[] for _ in range(12)]
        R2 = adj + R
        gi = 0
        if adj:
            gaps[0] += adj; gi = 1
        for k in range(0, len(R), 2):
            gaps[gi] += R[k:k+2]; gi += 1
        for k in range(12):
            if M: E(M[k])
            for x in gaps[k]: E(x)
        if R: E("  s_waitcnt lgkmcnt(0)")
    if stamps: E(f"  s_memtime s[{s_st0+4}:{s_st0+5}]")
    E(f"""  s_mul_i32 s{s_t}, s{s_br}, {QKV_BR}
  s_lshl_b32 s{s_t+1}, s{s_ohp}, 1
  s_add_u32 s{s_t+1}, s{s_t+1}, s{s_wn}
  s_mul_i32 s{s_t+1}, s{s_t+1}, {QKV_HEAD}
  s_add_u32 s{s_t}, s{s_t}, s{s_t+1}
  s_lshl_b32 s{s_t+1}, s{s_omt}, 3
  s_lshl_b32 s{s_t+2}, s{s_wm}, 2
  s_add_u32 s{s_t+1}, s{s_t+1}, s{s_t+2}
  s_lshl_b32 s{s_t+1}, s{s_t+1}, 11
  s_add_u32 s{s_t}, s{s_t}, s{s_t+1}
  v_add_u32 v{vT}, s{s_t}, v{vT}
  s_mov_b32 s{s_t+3}, {hex(f2u(QSCALE))}
  s_nop 7""")
    if do_store:
        k = 0
        for mi in range(4):
            for t in range(3):
                c = ACC(mi, t)
                for j in range(2):
                    base = vF + 12*(k % 4); k += 1
                    for r in range(8): E(f"  v_accvgpr_read_b32 v{base+r}, a{c+8*j+r}")
                    if t == 0:
                        for r in range(8): E(f"  v_mul_f32 v{base+r}, s{s_t+3}, v{base+r}")
                    for r in range(4): E(f"  v_cvt_pk_bf16_f32 v{base+8+r}, v{base+2*r}, v{base+2*r+1}")
                    E(f"  s_mov_b32 s{s_t+4}, {t*QKV_TYPE + mi*2048 + j*1024}")
                    E(f"  buffer_store_dwordx4 v[{base+8}:{base+11}], v{vT}, s[{sWS}:{sWS+3}], s{s_t+4} offen {st_flags}")
    def stamp_out():
        E(f"""  s_memtime s[{s_st0+6}:{s_st0+7}]
  s_waitcnt vmcnt(0)
  s_memtime s[{s_t}:{s_t+1}]
  s_waitcnt lgkmcnt(0)
  v_mov_b32 v8, s{s_st0}
  v_mov_b32 v9, s{s_st0+2}
  v_mov_b32 v10, s{s_st0+4}
  v_mov_b32 v11, s{s_st0+6}
  v_mov_b32 v12, s{s_t}
  s_lshl_b32 s{s_t+2}, s2, 3
  s_add_u32 s{s_t+2}, s{s_t+2}, s{s_w}
  s_lshl_b32 s{s_t+2}, s{s_t+2}, 5
  s_add_u32 s{s_t+2}, s{s_t+2}, {WS_STAMP}
  v_mov_b32 v13, 0
  buffer_store_dwordx4 v[8:11], v13, s[{sWS}:{sWS+3}], s{s_t+2} offen
  buffer_store_dword v12, v13, s[{sWS}:{sWS+3}], s{s_t+2} offen offset:16""")
    if stamps: stamp_out()
    if prof: E(prof_end(0))
    E("  s_endpgm")
    tr = list(common_tr); TR["xl"] = tr; cur[0] = tr
    E(f"L_{name}_xl:", tr=False)
    vo = 8
    E(f"""  s_sub_u32 s{s_wm}, s{s_w}, 4
  s_lshl_b32 s{s_t}, s{s_mt}, 8
  s_lshl_b32 s{s_t+1}, s{s_wm}, 7
  s_add_u32 s{s_t}, s{s_t}, s{s_t+1}
  v_lshrrev_b32 v2, 3, v{vLane}
  v_add_u32 v2, s{s_t}, v2
  v_lshlrev_b32 v2, 11, v2
  v_and_b32 v3, 7, v{vLane}
  v_lshrrev_b32 v4, 4, v{vLane}
  v_xor_b32 v3, v3, v4
  v_lshlrev_b32 v3, 4, v3
  v_add_u32 v4, v2, v3
  v_xor_b32 v3, 64, v3
  v_add_u32 v5, v2, v3
  s_lshl_b32 s{s_m0}, s{s_wm}, 14""")
    for i in range(16):
        E(f"  v_add_u32 v{vo+i}, {i*8*2048 - 1024*(i % 4)}, v{4+(i&1)}")
    def xdma(s):
        if not do_dma: return
        E(f"  s_movk_i32 s{s_k}, {128*s}")
        for i in range(16):
            if i % 4 == 0:
                E(f"  s_add_u32 m0, s{s_m0}, {(s % NXS)*XSLOT + 1024*i}\n  s_nop 0")
            off = f" offset:{1024*(i%4)}" if i % 4 else ""
            E(f"  buffer_load_dwordx4 v{vo+i}, s[{sX}:{sX+3}], s{s_k} offen{off} lds")
    xdma(0); xdma(1)
    if do_dma: E("  s_waitcnt vmcnt(16)")
    xdma(2)
    E("  s_barrier")
    for hs in range(31):
        if hs % 2 == 1:
            s = (hs+1)//2
            if do_dma:
                n_younger = 16 * len([x for x in (s+1,) if x <= 15])
                if s == 1: n_younger = 16
                E(f"  s_waitcnt vmcnt({n_younger})")
        E("  s_barrier")
        if hs % 2 == 1:
            s = (hs+1)//2
            if s + 2 <= 15: xdma(s+2)
    E("  s_endpgm")
    tr = list(common_tr); TR["wl"] = tr; cur[0] = tr
    E(f"L_{name}_wl:", tr=False)
    E(f"""  v_bfe_u32 v2, v{vLane}, 3, 2
  v_mul_u32_u24 v3, 6144, v2
  v_bfe_u32 v4, v{vLane}, 2, 1
  v_lshrrev_b32 v5, 1, v2
  v_xor_b32 v4, v4, v5
  v_lshlrev_b32 v4, 6, v4
  v_and_b32 v5, 3, v{vLane}
  v_lshlrev_b32 v5, 4, v5
  v_add3_u32 v3, v3, v4, v5
  s_lshl_b32 s{s_t}, s{s_hp}, 7
  v_add_u32 v3, s{s_t}, v3
  v_lshrrev_b32 v4, 5, v{vLane}""")
    for mm in range(12):
        a = lambda uu: (4*(uu//3))*6144 + (uu % 3)*2048
        A, B = a(2*mm), a(2*mm+1)
        E(f"  v_mul_u32_u24 v5, {B-A}, v4\n  v_add_u32 v5, {A - 1024*(mm % 4)}, v5\n  v_add_u32 v{vo+mm}, v5, v3")
    def wdma(hs):
        if not do_dma: return
        E(f"  s_mov_b32 s{s_k}, {32*6144*hs}")
        for mm in range(12):
            if mm % 4 == 0:
                E(f"  s_mov_b32 m0, {WBASE + (hs % NWS)*WSLOT + 1024*mm}\n  s_nop 0")
            off = f" offset:{1024*(mm%4)}" if mm % 4 else ""
            E(f"  buffer_load_dwordx4 v{vo+mm}, s[{sW}:{sW+3}], s{s_k} offen{off} lds")
    for hs in range(5): wdma(hs)
    if do_dma: E("  s_waitcnt vmcnt(48)")
    E("  s_barrier")
    for hs in range(31):
        if do_dma:
            younger = len([x for x in (hs+2, hs+3, hs+4) if x <= 31])
            E(f"  s_waitcnt vmcnt({12*younger})")
        E("  s_barrier")
        if hs + 5 <= 31: wdma(hs+5)
    E("  s_endpgm")
    tr = list(common_tr); TR["pf"] = tr; cur[0] = tr
    E(f"L_{name}_pf:", tr=False)
    E(f"""  s_lshl_b32 s{s_t}, s{s_mt}, 8
  s_and_b32 s{s_t+1}, s{s_hp}, 7
  s_lshl_b32 s{s_t+1}, s{s_t+1}, 5
  s_add_u32 s{s_t}, s{s_t}, s{s_t+1}
  v_add_u32 v2, s{s_t}, v{vLane}
  v_lshlrev_b32 v2, 11, v2
  v_mov_b32 v6, 0x7f000000
  v_cmp_gt_u32 vcc, 32, v{vLane}
  s_nop 1
  v_cndmask_b32 v2, v6, v2, vcc
  v_mul_u32_u24 v3, 0x5556, v{vLane}
  v_lshrrev_b32 v3, 16, v3
  v_mul_u32_u24 v4, 3, v3
  v_sub_u32 v4, v{vLane}, v4
  s_and_b32 s{s_t}, s{s_mt}, 3
  s_lshl_b32 s{s_t}, s{s_t}, 4
  v_add_u32 v3, s{s_t}, v3
  v_mul_u32_u24 v3, 6144, v3
  v_lshlrev_b32 v4, 11, v4
  s_lshl_b32 s{s_t}, s{s_hp}, 7
  v_add3_u32 v3, v3, v4, s{s_t}
  v_cmp_gt_u32 vcc, 48, v{vLane}
  s_nop 1
  v_cndmask_b32 v3, v6, v3, vcc""")
    def pfetch(s):
        if not do_pf or s > 15: return
        E(f"""  s_movk_i32 s{s_k}, {128*s}
  buffer_load_dword v4, v2, s[{sX}:{sX+3}], s{s_k} offen
  s_mov_b32 s{s_k}, {64*6144*s}
  buffer_load_dword v5, v3, s[{sW}:{sW+3}], s{s_k} offen""")
    for s in range(2, pfd+1): pfetch(s)
    E("  s_barrier")
    for hs in range(31):
        E("  s_barrier")
        if hs % 2 == 1:
            s = (hs+1)//2
            pfetch(s + pfd)
    if do_gate:
        sA = 60; sG = 64
        E(srd(sA, 30, S*D*2)); E(srd(sG, 32, D*2))
        E(f"""  s_waitcnt vmcnt(0)
  v_lshlrev_b32 v2, 5, v{vLane}
  s_lshl_b32 s{s_k}, s2, 14
  buffer_load_dwordx4 v[8:11], v2, s[{sG}:{sG+3}], 0 offen
  buffer_load_dwordx4 v[12:15], v2, s[{sG}:{sG+3}], 0 offen offset:16""")
        for r in range(4):
            E(f"""  buffer_load_dwordx4 v[{16+8*r}:{19+8*r}], v2, s[{sA}:{sA+3}], s{s_k} offen
  buffer_load_dwordx4 v[{20+8*r}:{23+8*r}], v2, s[{sA}:{sA+3}], s{s_k} offen offset:16
  s_add_u32 s{s_k}, s{s_k}, 2048""")
        gate_rows = []
        def gate_row(src, dstlane):
            E("  v_mov_b32 v6, 0")
            for q in range(8):
                E(f"""  v_lshlrev_b32 v3, 16, v{src+q}
  v_lshlrev_b32 v4, 16, v{8+q}
  v_mul_f32 v3, v3, v4
  v_and_b32 v5, 0xffff0000, v{src+q}
  v_and_b32 v4, 0xffff0000, v{8+q}
  v_mul_f32 v5, v5, v4
  v_cvt_pk_bf16_f32 v3, v3, v5
  v_lshlrev_b32 v4, 16, v3
  v_and_b32 v3, 0xffff0000, v3
  v_add_f32 v6, v6, v4
  v_add_f32 v6, v6, v3""")
            E(f"""  s_nop 1
  v_add_f32_dpp v6, v6, v6 quad_perm:[1,0,3,2] row_mask:0xf bank_mask:0xf
  s_nop 1
  v_add_f32_dpp v6, v6, v6 quad_perm:[2,3,0,1] row_mask:0xf bank_mask:0xf
  s_nop 1
  v_add_f32_dpp v6, v6, v6 row_half_mirror row_mask:0xf bank_mask:0xf
  s_nop 1
  v_add_f32_dpp v6, v6, v6 row_mirror row_mask:0xf bank_mask:0xf
  s_nop 1
  v_readlane_b32 s{s_t}, v6, 0
  v_readlane_b32 s{s_t+1}, v6, 16
  v_readlane_b32 s{s_t+2}, v6, 32
  v_readlane_b32 s{s_t+3}, v6, 48
  s_nop 1
  v_mov_b32 v3, s{s_t}
  v_add_f32 v3, s{s_t+1}, v3
  v_add_f32 v3, s{s_t+2}, v3
  v_add_f32 v3, s{s_t+3}, v3
  v_cmp_eq_u32 vcc, {dstlane}, v{vLane}
  s_nop 1
  v_cndmask_b32 v7, v7, v3, vcc""")
        E("  v_mov_b32 v7, 0\n  s_waitcnt vmcnt(0)")
        for r in range(4): gate_row(16+8*r, r)
        for r in range(4):
            E(f"""  buffer_load_dwordx4 v[{16+8*r}:{19+8*r}], v2, s[{sA}:{sA+3}], s{s_k} offen
  buffer_load_dwordx4 v[{20+8*r}:{23+8*r}], v2, s[{sA}:{sA+3}], s{s_k} offen offset:16
  s_add_u32 s{s_k}, s{s_k}, 2048""")
        E("  s_waitcnt vmcnt(0)")
        for r in range(4): gate_row(16+8*r, 4+r)
        E(f"""  v_cvt_pk_bf16_f32 v7, v7, v7
  v_lshlrev_b32 v7, 16, v7
  v_mul_f32 v3, {hex(f2u(-LOG2E))}, v7
  v_exp_f32 v3, v3
  s_nop 0
  v_add_f32 v3, 1.0, v3
  v_rcp_f32 v3, v3
  s_nop 0
  v_cvt_pk_bf16_f32 v3, v3, v3
  v_lshlrev_b32 v3, 16, v3
  v_sub_f32 v4, 1.0, v3
  v_cvt_pk_bf16_f32 v4, v4, v4
  v_lshlrev_b32 v4, 16, v4
  v_lshlrev_b32 v5, 2, v{vLane}
  s_lshl_b32 s{s_t}, s2, 5
  v_add_u32 v5, s{s_t}, v5
  v_mov_b32 v6, 0x7f000000
  v_cmp_gt_u32 vcc, 8, v{vLane}
  s_nop 1
  v_cndmask_b32 v5, v6, v5, vcc
  s_mov_b32 s{s_t}, {WS_G}
  s_add_u32 s{s_t+1}, s{s_t}, 8192
  buffer_store_dword v3, v5, s[{sWS}:{sWS+3}], s{s_t} offen
  buffer_store_dword v4, v5, s[{sWS}:{sWS+3}], s{s_t+1} offen""")
    E(f"L_{name}_end:", tr=False)
    E("  s_endpgm")
    src = kernel_header(name) + "\n".join(P) + "\n" + kernel_footer(name, 256, 64, 100 if prof else 96)
    return src, TR

if __name__ == "__main__":
    src, TR = gen_g1b()
    for k, T in TR.items(): lint(T, "g1b_"+k)
    open("g1b.s", "w").write('.amdgcn_target "amdgcn-amd-amdhsa--gfx950"\n' + src)
```

```python
from common import *
from asmdsl import *

def g3_lds(NS): return NS*4096

def gen_g3(name="proj_kernel", stamps=False, D=12, NS=24, st_flags="", do_mfma=True, do_ds=True, kb0=0, prof=False):
    P = []; tr = []
    def E(s, t=True):
        for l in s.split("\n"):
            if l.strip() == "": continue
            P.append(l)
            if t: tr.append(l)
    assert NS >= D + 7
    sWS, sWA, sWB, sOUT = 8, 12, 16, 20
    s_w, s_mt, s_nt = 24, 25, 26
    s_o, s_so, s_l, s_k = 27, 28, 29, 30
    s_t = 32; s_st0 = 40
    vLane, vL16, vW, vRd = 1, 2, 3, 4
    vT = 5
    vWF = 8
    vO = 40
    NO = D + 1
    nv = vO + 8*NO
    accum = (nv + 3)//4*4
    E(f"  s_cmp_ge_u32 s2, 256\n  s_cbranch_scc1 L_{name}_end")
    if prof: E(prof_begin(2))
    E(f"""  s_load_dwordx2 s[4:5], s[0:1], {KA_WS}
  s_load_dwordx2 s[6:7], s[0:1], {KA_AWO}
  s_load_dwordx2 s[34:35], s[0:1], {KA_BWO}
  s_load_dwordx2 s[36:37], s[0:1], {KA_OUT}
  v_and_b32 v{vLane}, 63, v0
  v_lshrrev_b32 v{vT}, 6, v0
  s_and_b32 s{s_t}, s2, 7
  v_readfirstlane_b32 s{s_w}, v{vT}
  s_lshr_b32 s{s_t+1}, s2, 3
  s_lshr_b32 s{s_mt}, s{s_t}, 1
  s_lshl_b32 s{s_mt}, s{s_mt}, 2
  s_and_b32 s{s_nt}, s{s_t+1}, 3
  s_add_u32 s{s_mt}, s{s_mt}, s{s_nt}
  s_and_b32 s{s_nt}, s{s_t}, 1
  s_lshl_b32 s{s_nt}, s{s_nt}, 3
  s_lshr_b32 s{s_t+1}, s{s_t+1}, 2
  s_add_u32 s{s_nt}, s{s_nt}, s{s_t+1}
  v_lshlrev_b32 v{vL16}, 4, v{vLane}
  s_lshl_b32 s{s_o}, s{s_mt}, 2
  s_add_u32 s{s_o}, s{s_o}, s{s_w}
  s_lshl_b32 s{s_o}, s{s_o}, 17
  s_add_u32 s{s_o}, s{s_o}, {WS_O}
  s_lshl_b32 s{s_l}, s{s_w}, 10
  v_lshrrev_b32 v{vT}, 3, v{vLane}
  s_lshl_b32 s{s_t}, s{s_w}, 3
  v_add_u32 v{vW}, s{s_t}, v{vT}
  v_lshlrev_b32 v{vW}, 11, v{vW}
  v_and_b32 v{vT+1}, 7, v{vLane}
  v_bfe_u32 v{vT}, v{vLane}, 4, 1
  v_lshlrev_b32 v{vT}, 2, v{vT}
  v_xor_b32 v{vT}, v{vT}, v{vT+1}
  v_lshlrev_b32 v{vT}, 4, v{vT}
  s_lshl_b32 s{s_t}, s{s_nt}, 7
  v_add3_u32 v{vW}, v{vW}, v{vT}, s{s_t}
  v_lshrrev_b32 v{vT}, 5, v{vLane}
  v_lshlrev_b32 v{vRd}, 9, v{vT}
  v_bfe_u32 v{vT}, v{vLane}, 2, 2
  v_lshlrev_b32 v{vT+1}, 7, v{vT}
  v_add_u32 v{vRd}, v{vRd}, v{vT+1}
  v_lshrrev_b32 v{vT}, 1, v{vT}
  v_lshlrev_b32 v{vT}, 6, v{vT}
  v_bfe_u32 v{vT+1}, v{vLane}, 4, 1
  v_lshlrev_b32 v{vT+1}, 5, v{vT+1}
  v_add3_u32 v{vRd}, v{vRd}, v{vT}, v{vT+1}
  v_and_b32 v{vT}, 3, v{vLane}
  v_lshlrev_b32 v{vT}, 3, v{vT}
  v_add_u32 v{vRd}, v{vRd}, v{vT}
  v_xor_b32 v{vT+1}, 64, v{vRd}
  v_add_u32 v{vT+2}, 0x10000, v{vRd}
  s_waitcnt lgkmcnt(0)""")
    vR = {(0,0): vRd, (1,0): vT+1, (0,1): vT+2, (1,1): vT}
    E(f"  v_xor_b32 v{vT}, 64, v{vT+2}")
    E(srd(sWS, 4, WS_SIZE)); E(srd(sWA, 6, D_*D_*2)); E(srd(sWB, 34, D_*D_*2)); E(srd(sOUT, 36, S*D_*2))
    def stamp(i):
        if stamps: E(f"  s_memtime s[{s_st0+2*i}:{s_st0+2*i+1}]")
    stamp(0)
    nvm = [0]; mW = {}; mO = {}
    def issue(v):
        kw = v + D + 4; ko = v + D
        if 0 <= kw < 64:
            srdw = sWA if kw < 32 else sWB
            E(f"  s_add_u32 m0, s{s_l}, {(kw % NS)*4096}\n  s_mov_b32 s{s_k}, {(kw % 32)*32*2048}")
            E(f"  buffer_load_dwordx4 v{vW}, s[{srdw}:{srdw+3}], s{s_k} offen lds"); nvm[0] += 1; mW[kw] = nvm[0]
        if 0 <= ko < 64:
            r = vO + 8*(ko % NO)
            E(f"  s_add_u32 s{s_so}, s{s_o}, {ko*2048}")
            for j in range(2):
                E(f"  buffer_load_dwordx4 v[{r+4*j}:{r+4*j+3}], v{vL16}, s[{sWS}:{sWS+3}], s{s_so} offen offset:{1024*j}"); nvm[0] += 1
            mO[ko] = nvm[0]
    def waitv(m):
        n = nvm[0] - m
        assert n <= 63
        E(f"  s_waitcnt vmcnt({n})")
    def reads(kb):
        L = []
        slot = kb % NS; hi = 1 if slot*4096 >= 65536 else 0
        off0 = slot*4096 - hi*65536
        st = kb & 1
        for j in range(2):
            for nh in range(2):
                for p in range(2):
                    r = vWF + 16*st + 8*j + 4*nh + 2*p
                    L.append(f"  ds_read_b64_tr_b16 v[{r}:{r+1}], v{vR[(nh,hi)]} offset:{off0 + (4*j + 2*p)*512}")
        return L
    for v in range(-D-4, 0): issue(v)
    waitv(mW[3]); E("  s_barrier")
    stamp(1)
    for z in reads(0): E(z)
    for kb in range(64):
        st = kb & 1
        if kb % 4 == 3 and kb < 63:
            waitv(min(mW[min(kb+4, 63)], 10**9) if False else mW[kb+4]); E("  s_barrier")
        R = reads(kb+1) if (kb < 63 and do_ds) else []
        waitv(mO[kb])
        E(f"  s_waitcnt lgkmcnt(0)")
        o = vO + 8*(kb % NO)
        M = []
        for j in range(2):
            for nh in range(2):
                a = vWF + 16*st + 8*j + 4*nh
                c = "0" if (kb == 0 and j == 0) else f"a[{16*nh}:{16*nh+15}]"
                M.append(f"  v_mfma_f32_32x32x16_bf16 a[{16*nh}:{16*nh+15}], v[{a}:{a+3}], v[{o+4*j}:{o+4*j+3}], {c}")
        for q in range(4):
            if do_mfma: E(M[q])
            for z in R[2*q:2*q+2]: E(z)
            if q == 3: issue(kb)
    stamp(2)
    E(f"""  s_lshl_b32 s{s_t}, s{s_mt}, 2
  s_add_u32 s{s_t}, s{s_t}, s{s_w}
  s_lshl_b32 s{s_t}, s{s_t}, 16
  s_lshl_b32 s{s_t+1}, s{s_nt}, 7
  s_add_u32 s{s_t}, s{s_t}, s{s_t+1}
  v_and_b32 v8, 31, v{vLane}
  v_lshlrev_b32 v8, 11, v8
  v_lshrrev_b32 v9, 5, v{vLane}
  v_lshlrev_b32 v9, 4, v9
  v_add_u32 v8, v8, v9
  s_nop 7""")
    for nh in range(2):
        for k2 in range(2):
            base = 12 + 12*((2*nh + k2) % 2)
            for r in range(8): E(f"  v_accvgpr_read_b32 v{base+r}, a{16*nh + 8*k2 + r}")
            for r in range(4): E(f"  v_cvt_pk_bf16_f32 v{base+8+r}, v{base+2*r}, v{base+2*r+1}")
            E(f"  s_nop 1\n  v_permlane32_swap_b32 v{base+8}, v{base+10}\n  v_permlane32_swap_b32 v{base+9}, v{base+11}")
            E(f"  s_nop 1\n  buffer_store_dwordx4 v[{base+8}:{base+11}], v8, s[{sOUT}:{sOUT+3}], s{s_t} offen offset:{64*nh + 32*k2} {st_flags}")
    if stamps:
        E(f"""  s_memtime s[{s_st0+6}:{s_st0+7}]
  s_waitcnt vmcnt(0)
  s_memtime s[{s_st0+8}:{s_st0+9}]
  s_waitcnt lgkmcnt(0)
  v_mov_b32 v8, s{s_st0}
  v_mov_b32 v9, s{s_st0+2}
  v_mov_b32 v10, s{s_st0+4}
  v_mov_b32 v11, s{s_st0+6}
  v_mov_b32 v12, s{s_st0+8}
  s_lshl_b32 s{s_t+2}, s2, 3
  s_add_u32 s{s_t+2}, s{s_t+2}, s{s_w}
  s_lshl_b32 s{s_t+2}, s{s_t+2}, 5
  s_add_u32 s{s_t+2}, s{s_t+2}, {WS_STAMP}
  v_mov_b32 v14, 0
  buffer_store_dwordx4 v[8:11], v14, s[{sWS}:{sWS+3}], s{s_t+2} offen
  buffer_store_dword v12, v14, s[{sWS}:{sWS+3}], s{s_t+2} offen offset:16""")
    if prof: E(prof_end(2))
    E(f"L_{name}_end:", False)
    E("  s_endpgm")
    src = kernel_header(name) + "\n".join(P) + "\n" + kernel_footer(name, accum + 32, accum, 100 if prof else 96)
    return src, {"g3": tr}, accum + 32
D_ = D if False else 1024

if __name__ == "__main__":
    src, TR, nv = gen_g3()
    for k, T in TR.items(): lint(T, k)
    open("g3.s", "w").write('.amdgcn_target "amdgcn-amd-amdhsa--gfx950"\n' + src)
```

```python
S = 2048; D = 1024; H = 32; DH = 32
KA_AX, KA_AWQKV, KA_AWO, KA_BX, KA_BWQKV, KA_BWO, KA_GW, KA_OUT, KA_DBG, KA_WS = [8*i for i in range(10)]
WS_QKV = 0
QKV_TILE = 2048
QKV_HEAD = 64*QKV_TILE
QKV_TYPE = 32*QKV_HEAD
QKV_BR = 3*QKV_TYPE
WS_O = 2*QKV_BR
O_TILE = 64*2048
WS_G = WS_O + 64*O_TILE
WS_STAMP = WS_G + 65536
WS_SIZE = 0x3000000
LOG2E = 1.4426950408889634
QSCALE = (DH ** -0.5) * LOG2E

import struct
def f2u(x): return struct.unpack("<I", struct.pack("<f", x))[0]

def kernel_header(name):
    return f""".text
.globl {name}
.p2align 8
.type {name},@function
{name}:
"""
def kernel_footer(name, nvgpr, accum, nsgpr=96):
    return f""".section .rodata,"a"
.p2align 6
.amdhsa_kernel {name}
  .amdhsa_next_free_vgpr {nvgpr}
  .amdhsa_next_free_sgpr {nsgpr}
  .amdhsa_accum_offset {accum}
  .amdhsa_group_segment_fixed_size 0
  .amdhsa_kernarg_size 80
  .amdhsa_user_sgpr_count 2
  .amdhsa_user_sgpr_kernarg_segment_ptr 1
  .amdhsa_system_sgpr_workgroup_id_x 1
  .amdhsa_float_denorm_mode_32 3
.end_amdhsa_kernel
.text
"""
def srd(dst, ptr, nbytes):
    return f"""  s_mov_b32 s{dst}, s{ptr}
  s_and_b32 s{dst+1}, s{ptr+1}, 0xffff
  s_mov_b32 s{dst+2}, {hex(nbytes)}
  s_mov_b32 s{dst+3}, 0x20000
"""

def prof_begin(kidx, sbase=84):
    b = sbase
    return f"""  s_load_dwordx2 s[{b}:{b+1}], s[0:1], {KA_DBG}
  s_memrealtime s[{b+2}:{b+3}]
  s_memtime s[{b+4}:{b+5}]
  s_waitcnt lgkmcnt(0)
  s_add_u32 s{b}, s{b}, {512*(2-kidx)}
  s_addc_u32 s{b+1}, s{b+1}, 0
"""
def prof_end(kidx, sbase=84, v=2):
    b = sbase
    return f"""  s_and_b32 s{b+6}, s2, 31
  s_lshr_b32 s{b+7}, s2, 5
  s_cmp_eq_u32 s{b+6}, s{b+7}
  s_cbranch_scc0 L_prof_skip{kidx}
  s_waitcnt vmcnt(0)
  s_memrealtime s[{b+6}:{b+7}]
  s_memtime s[{b+8}:{b+9}]
  s_and_b32 s{b+1}, s{b+1}, 0xffff
  s_mov_b32 s{b+10}, s{b+2}
  s_mov_b32 s{b+11}, s{b+4}
  s_waitcnt lgkmcnt(0)
  s_sub_u32 s{b+11}, s{b+8}, s{b+11}
  s_mov_b32 s{b+2}, 256
  s_mov_b32 s{b+3}, 0x20000
  s_not_b32 s{b+10}, s{b+10}
  v_mov_b32 v{v}, s{b+10}
  v_mov_b32 v{v+1}, s{b+6}
  v_mov_b32 v{v+2}, s{b+11}
  v_mov_b32 v{v+3}, 0
  s_mov_b64 exec, 1
  buffer_atomic_umax v{v}, v{v+3}, s[{b}:{b+3}], 0 offen offset:{16*kidx}
  buffer_atomic_umax v{v+1}, v{v+3}, s[{b}:{b+3}], 0 offen offset:{16*kidx+4}
  buffer_atomic_umax v{v+2}, v{v+3}, s[{b}:{b+3}], 0 offen offset:{16*kidx+8}
L_prof_skip{kidx}:
"""
```
